```python
import torch

def _softmax(x, axis=-1):
    return torch.softmax(x, dim=axis)
def _gelu(x):
    return torch.nn.functional.gelu(x, approximate="tanh")
def _silu(x):
    return torch.nn.functional.silu(x)
def _sigmoid(x):
    return torch.sigmoid(x)
def _layernorm(x, axis=-1, eps=1e-5):
    m = x.mean(dim=axis, keepdim=True)
    v = x.var(dim=axis, keepdim=True, unbiased=False)
    return (x - m) / torch.sqrt(v + eps)
def _scatter_add(tgt, idx, src, axis=0):
    return tgt.clone().index_add_(axis, idx, src)
def _segment_sum(src, seg, n):
    out = torch.zeros((n,) + src.shape[1:], dtype=src.dtype)
    return out.index_add_(0, seg, src)
def _pad(x, pw):
    flat = tuple(v for pair in reversed(pw) for v in pair)
    return torch.nn.functional.pad(x, flat)

kernel_name = 'parallel_sum__mha_block__glu_gated_reglu__prompt'

def setup_inputs():

    _w = (lambda a: (lambda t: t.to(torch.bfloat16) if t.is_floating_point() else t)(torch.as_tensor(a)))
    def _A_setup():
        B, S, D, H = 1, 2048, 512, 32
        return {
            "x": _w((lambda *s: torch.randn(*s, dtype=torch.bfloat16) * 0.05)(B, S, D)),
            "wqkv": _w((lambda *s: torch.randn(*s, dtype=torch.bfloat16) * 0.05)(D, 3 * D)),
            "wo": _w((lambda *s: torch.randn(*s, dtype=torch.bfloat16) * 0.05)(D, D)),
        }
    _A_in = _A_setup()

    def _B_setup():
        B, S, D, F = 1, 2048, 512, 1792
        return {
            "x": _w((lambda *s: torch.randn(*s, dtype=torch.bfloat16) * 0.05)(B, S, D)),
            "W_gate": _w((lambda *s: torch.randn(*s, dtype=torch.bfloat16) * 0.4)(D, F) * (2.0 / D) ** 0.5),
            "W_up": _w((lambda *s: torch.randn(*s, dtype=torch.bfloat16) * 0.4)(D, F) * (2.0 / D) ** 0.5),
            "W_down": _w((lambda *s: torch.randn(*s, dtype=torch.bfloat16) * 0.4)(F, D) * (1.0 / F) ** 0.5),
        }
    _B_in = _B_setup()

    return {
        "A_x": _A_in["x"],
        "A_wqkv": _A_in["wqkv"],
        "A_wo": _A_in["wo"],
        "B_x": _B_in["x"],
        "B_W_gate": _B_in["W_gate"],
        "B_W_up": _B_in["W_up"],
        "B_W_down": _B_in["W_down"],
    }

def reference(A_x, A_wqkv, A_wo, B_x, B_W_gate, B_W_up, B_W_down):
    def _A_ref(x, wqkv, wo):
        B, S, D = x.shape
        H = 32
        Dh = D // H
        qkv = (lambda x, *d: x.permute(*d))((x @ wqkv).reshape(B, S, 3, H, Dh), 2, 0, 3, 1, 4)
        q, k, v = qkv[0], qkv[1], qkv[2]
        scores = torch.einsum("bhqd,bhkd->bhqk", q, k) * (Dh ** -0.5)
        p = _softmax(scores, axis=-1)
        o = torch.einsum("bhqk,bhkd->bhqd", p, v)
        return (lambda x, *d: x.permute(*d))(o, 0, 2, 1, 3).reshape(B, S, D) @ wo

    def _B_ref(x, W_gate, W_up, W_down):
        gate = torch.einsum("bsd,df->bsf", x, W_gate)
        up = torch.einsum("bsd,df->bsf", x, W_up)
        gate = gate * (lambda x, dt: x.to(dt))(gate > 0, gate.dtype)
        h = gate * up
        return torch.einsum("bsf,fd->bsd", h, W_down)

    x = A_x
    xn = _layernorm(x, axis=-1)
    return x + _A_ref(xn, A_wqkv, A_wo) + _B_ref(xn, B_W_gate, B_W_up, B_W_down)
```

```python
import re

TRANS = ('v_exp_f32', 'v_log_f32', 'v_rcp_f32', 'v_rsq_f32', 'v_sqrt_f32', 'v_sin_f32', 'v_cos_f32', 'v_exp_f16', 'v_rcp_iflag_f32')

def parse_regs(tok):
    tok = tok.strip()
    tok = re.sub(r'^-', '', tok)
    m = re.match(r'^abs\((.*)\)$', tok)
    if m: tok = m.group(1)
    tok = tok.strip('|')
    m = re.match(r'^([vsa])\[(\d+):(\d+)\]$', tok)
    if m:
        return {(m.group(1), i) for i in range(int(m.group(2)), int(m.group(3)) + 1)}
    m = re.match(r'^([vsa])(\d+)$', tok)
    if m:
        return {(m.group(1), int(m.group(2)))}
    if tok in ('vcc', 'vcc_lo', 'vcc_hi'): return {('vcc', 0)}
    if tok == 'm0': return {('m0', 0)}
    if tok in ('exec', 'exec_lo', 'exec_hi'): return {('exec', 0)}
    return set()

class Ins:
    def __init__(self, line):
        self.line = line
        t = line.split(';')[0].strip()
        self.is_label = t.endswith(':')
        self.is_dir = t.startswith('.') and not self.is_label
        self.empty = (t == '')
        self.op = ''
        self.wr = set(); self.rd = set()
        self.slots = 0
        if self.is_label or self.is_dir or self.empty: return
        parts = t.split(None, 1)
        self.op = parts[0]
        rest = parts[1] if len(parts) > 1 else ''
        ops = [o.strip() for o in rest.split(',')] if rest else []
        clean = []
        self.mods = ''
        for o in ops:
            w = o.split()
            if w:
                clean.append(w[0]); self.mods += ' ' + ' '.join(w[1:])
        self.ops = clean
        op = self.op
        self.slots = 1
        if op == 's_nop': self.slots = int(clean[0], 0) + 1
        self.mfma = op.startswith('v_mfma') or op.startswith('v_smfmac')
        self.valu = op.startswith('v_') and not self.mfma
        self.trans = any(op.startswith(x) for x in TRANS)
        self.dot = op.startswith('v_dot')
        self.dpp = ('_dpp' in op) or ('quad_perm' in self.mods) or ('row_' in self.mods)
        self.perml = op.startswith('v_permlane')
        self.rdlane = op.startswith('v_readlane') or op.startswith('v_readfirstlane')
        self.vmem = op.startswith('buffer_') or op.startswith('global_') or op.startswith('flat_')
        self.ds = op.startswith('ds_')
        self.salu = op.startswith('s_')
        self.ldsdma = self.vmem and (' lds' in (' ' + self.mods + ' ') or '_lds_' in op)
        R = [parse_regs(x) for x in clean]
        if self.mfma:
            self.wr = R[0]; self.A = R[1]; self.B = R[2]; self.C = R[3]
            self.rd = R[1] | R[2] | R[3]
            if op.startswith('v_smfmac'):
                self.B = R[2] | R[3]; self.C = R[0]; self.rd |= R[0]
            self.passes = 8 if '32x32' in op else 4
        elif self.valu:
            if op.startswith('v_cmp'):
                self.wr = R[0]; self.rd = set().union(*R[1:])
            elif self.perml:
                self.wr = R[0] | R[1]; self.rd = R[0] | R[1]
            elif op.startswith(('v_add_co', 'v_sub_co', 'v_addc_co', 'v_subb_co')):
                self.wr = R[0] | R[1]; self.rd = set().union(*R[2:])
            else:
                self.wr = R[0]; self.rd = set().union(*R[1:]) if len(R) > 1 else set()
                if op.startswith(('v_fmac', 'v_dot2c', 'v_pk_fmac')) or 'UNUSED_PRESERVE' in self.mods or self.dpp:
                    self.rd |= R[0]
        elif self.ds:
            if op.startswith(('ds_read', 'ds_bpermute', 'ds_permute', 'ds_swizzle')) or '_rtn' in op:
                self.wr = R[0]; self.rd = set().union(*R[1:])
            else:
                self.rd = set().union(*R)
        elif self.vmem:
            if self.ldsdma:
                self.rd = set().union(*R) | {('m0', 0)}
            elif 'load' in op:
                self.wr = R[0]; self.rd = set().union(*R[1:])
            elif 'atomic' in op and 'sc0' in self.mods:
                self.wr = R[0]; self.rd = set().union(*R)
            else:
                self.rd = set().union(*R) if R else set()
            self.widestore = ('store' in op) and (op.endswith('x4') or op.endswith('x3'))
            if self.widestore:
                self.sdata = R[0] if op.startswith('buffer') else R[1]
        elif self.salu:
            if op.startswith(('s_cmp', 's_cbranch', 's_branch', 's_waitcnt', 's_barrier', 's_nop', 's_endpgm', 's_setprio', 's_sleep', 's_bitcmp')):
                self.rd = set().union(*R) if R else set()
            else:
                self.wr = R[0] if R else set(); self.rd = set().union(*R[1:]) if len(R) > 1 else set()

def need(p, c):
    n = 0
    vw = {r for r in p.wr if r[0] in 'va' and r[0] != 'vcc'}
    sw = {r for r in p.wr if r[0] in ('s', 'vcc')}
    if p.valu:
        if c.mfma and (vw & c.rd): n = max(n, 3 if p.dot else 2)
        if p.trans and c.valu and not c.trans and (vw & c.rd): n = max(n, 1)
        if c.valu and (c.perml or c.dpp) and (vw & c.rd): n = max(n, 2)
        if c.valu and c.rdlane and (vw & c.rd): n = max(n, 1)
        if sw:
            if c.valu and (sw & c.rd): n = max(n, 4 if c.rdlane else 2)
            if c.valu and ('vcc', 0) in sw and c.op.startswith(('v_cndmask', 'v_addc', 'v_subb', 'v_div_fmas')): n = max(n, 4 if c.op.startswith('v_div_fmas') else 2)
            if c.vmem and (sw & c.rd): n = max(n, 5)
            if c.salu and (sw & c.rd): n = max(n, 1)
        if p.dot and (vw & (c.rd | c.wr)):
            if c.op == p.op:
                srcab = set().union(*[parse_regs(x) for x in c.ops[1:3]])
                if vw & srcab: n = max(n, 3)
            else:
                n = max(n, 3)
        if ('exec', 0) in p.wr: n = max(n, 5)
    if p.mfma:
        big = {8: 12, 4: 8}[p.passes]
        if c.mfma:
            if p.wr & (c.A | c.B): n = max(n, big)
            if p.wr & c.C:
                if not (p.wr == c.C and p.passes == c.passes): n = max(n, big - 2)
            elif p.wr & c.wr: n = max(n, big - 2)
        elif (c.valu or c.vmem or c.ds) and (p.wr & (c.rd | c.wr)): n = max(n, big)
        if (c.valu) and (p.C & c.wr): n = max(n, {8: 7, 4: 3}[p.passes])
    if p.salu and ('m0', 0) in p.wr and (c.ldsdma if c.vmem else False): n = max(n, 1)
    if p.vmem and getattr(p, 'widestore', False) and (c.valu or c.mfma or c.ds or c.vmem) and (p.sdata & c.wr): n = max(n, 2)
    return n

def fix_hazards(lines, verbose=False):
    out = []
    hist = []
    ninserted = 0
    for ln in lines:
        i = Ins(ln)
        if i.slots == 0:
            out.append(ln); continue
        req = 0
        dist = 0
        for p in reversed(hist):
            r = need(p, i) - dist
            if r > req: req = r
            dist += p.slots
            if dist > 20: break
        if req > 0:
            nop = f'    s_nop {req-1}'
            out.append(nop + '   ; auto')
            hist.append(Ins(nop)); ninserted += 1
            if verbose: print('nop', req, 'before', ln.strip())
        out.append(ln); hist.append(i)
        if i.op in ('s_branch', 's_endpgm', 's_setpc_b64'): hist = []
    return out

def check_branches(lines):
    ins = [Ins(l) for l in lines]
    labels = {l.line.split(';')[0].strip()[:-1]: k for k, l in enumerate(ins) if l.is_label}
    probs = []
    for k, i in enumerate(ins):
        if i.op.startswith('s_cbranch') or i.op == 's_branch':
            tgt = labels.get(i.ops[0])
            if tgt is None: continue
            pre = []
            d = 0
            for j in range(k, -1, -1):
                if ins[j].slots == 0: continue
                if j != k and ins[j].op in ('s_branch', 's_endpgm'): break
                pre.append(ins[j]); d += ins[j].slots
                if d > 20: break
            d2 = 0
            for j in range(tgt, len(ins)):
                c = ins[j]
                if c.slots == 0: continue
                dist = d2
                for p in pre:
                    if need(p, c) > dist:
                        probs.append((p.line.strip(), c.line.strip(), need(p, c), dist))
                    dist += p.slots
                d2 += c.slots
                if d2 > 20 or c.op in ('s_branch', 's_endpgm'): break
    return probs

class Asm:
    def __init__(self):
        self.l = []
    def __call__(self, s):
        for x in s.split('\n'):
            x = x.strip()
            if not x: continue
            if x.endswith(':') or x.startswith('.') or x.startswith(';'):
                self.l.append(x)
            else:
                self.l.append('    ' + x)
    def label(self, n): self.l.append(n + ':')
    def c(self, s): self.l.append('    ; ' + s)

def vr(b, n=1):
    return f'v{b}' if n == 1 else f'v[{b}:{b+n-1}]'
def sr(b, n=1):
    return f's{b}' if n == 1 else f's[{b}:{b+n-1}]'
```

```python
from dsl import *
import struct, math

WS_Q = 0
WS_K = 2 << 20
WS_V = 4 << 20
WS_Z = 6 << 20
WS_SIZE = 16 << 20
KA_X, KA_WQKV, KA_WO, KA_G, KA_U, KA_D, KA_OUT, KA_DBG, KA_WS = 0, 8, 16, 32, 40, 48, 56, 64, 72
MFMA = 'v_mfma_f32_32x32x16_bf16'

def f32bits(x):
    return struct.unpack('<I', struct.pack('<f', x))[0]

def srd(a, d, size):
    a(f's_mov_b32 s{d+2}, {size}')
    a(f's_mov_b32 s{d+3}, 0x00020000')

def wave_id(a, sreg):
    a('v_lshrrev_b32 v1, 6, v0')
    a(f'v_readfirstlane_b32 s{sreg}, v1')
    a('v_and_b32 v0, 63, v0')

def gemm_x(a, role, st_flags=''):
    P = role
    qkv = role == 'qkv'
    SLOT = 14336 if qkv else 24576
    R = 5 if qkv else 3
    NS = 16
    D = 2 if qkv else 3
    STAT = 0
    SB = 2048
    S_X, S_W, S_U, S_WS = 4, 8, 28, 12
    sW, sRB, sCT, sCNT, sXO, sWO, sDS, sRS, sT0, sT1, sONE = 16, 17, 18, 19, 20, 21, 22, 23, 24, 25, 32
    sEX = 26
    sDX, sDW = 33, 34
    vDX, vDW = 2, 3
    vBX0, vBX1, vBWA, vBWB, vBT = 4, 5, 6, 7, 8
    vX0, vX1, vWA, vWB, vT = 9, 10, 11, 12, 13
    vSX, vSXX, vCA, vCB = 14, 15, 16, 17
    vTMP = 18
    FT = 20
    FA, FB = 24, 40
    ACC = 64
    a(f's_load_dwordx2 s[{S_X}:{S_X+1}], s[0:1], {KA_X}')
    if qkv:
        a(f's_load_dwordx2 s[{S_W}:{S_W+1}], s[0:1], {KA_WQKV}')
    else:
        a(f's_load_dwordx2 s[{S_W}:{S_W+1}], s[0:1], {KA_G}')
        a(f's_load_dwordx2 s[{S_U}:{S_U+1}], s[0:1], {KA_U}')
    a(f's_load_dwordx2 s[{S_WS}:{S_WS+1}], s[0:1], {KA_WS}')
    wave_id(a, sW)
    a(f'''v_lshrrev_b32 v1, 2, v0
          s_lshl_b32 s{sT0}, s{sW}, 4
          v_add_u32 v1, s{sT0}, v1
          v_lshlrev_b32 v1, 10, v1
          v_lshrrev_b32 v{vTMP}, 4, v0
          v_xor_b32 v{vTMP}, v{vTMP}, v0
          v_and_b32 v{vTMP}, 3, v{vTMP}
          v_lshl_add_u32 v{vDX}, v{vTMP}, 4, v1''')
    if qkv:
        a(f'''s_mul_i32 s{sT0}, s{sW}, 12
              v_lshrrev_b32 v1, 2, v0
              v_add_u32 v1, s{sT0}, v1
              v_and_b32 v{vTMP}, 31, v1
              v_mul_u32_u24 v{vTMP}, 3072, v{vTMP}
              v_lshrrev_b32 v1, 5, v1
              v_lshl_add_u32 v{vTMP}, v1, 10, v{vTMP}
              v_and_b32 v1, 3, v0
              v_lshl_add_u32 v{vTMP}, v1, 4, v{vTMP}
              s_lshl_b32 s{sT0}, s{sCT}, 6
              v_add_u32 v{vDW}, s{sT0}, v{vTMP}
              s_mov_b32 s{sEX}, -1
              s_mov_b32 s{sEX+1}, 0xffff
              s_mul_i32 s{sDW}, s{sW}, 768
              s_add_u32 s{sDW}, s{sDW}, 8192''')
        WSTEP = 32 * 3072
    else:
        a(f'''v_bfe_u32 v1, v0, 2, 2
              s_lshl_b32 s{sT0}, s{sW}, 2
              v_add_u32 v1, s{sT0}, v1
              v_mul_u32_u24 v{vTMP}, 3584, v1
              v_lshrrev_b32 v1, 4, v0
              v_lshl_add_u32 v{vTMP}, v1, 6, v{vTMP}
              v_and_b32 v1, 3, v0
              v_lshl_add_u32 v{vTMP}, v1, 4, v{vTMP}
              s_lshl_b32 s{sT0}, s{sCT}, 8
              v_add_u32 v{vDW}, s{sT0}, v{vTMP}
              s_lshl_b32 s{sDW}, s{sW}, 10
              s_add_u32 s{sDW}, s{sDW}, 8192''')
        WSTEP = 32 * 3584
    a(f's_lshl_b32 s{sDX}, s{sW}, 10')
    a(f's_lshl_b32 s{sXO}, s{sRB}, 17')
    a(f's_mov_b32 s{sWO}, 0')
    a(f's_mov_b32 s{sDS}, {SB}')
    a(f's_mov_b32 s{sRS}, {SB}')
    a('s_waitcnt lgkmcnt(0)')
    srd(a, S_X, 2048 * 1024)
    srd(a, S_W, 512 * (3072 if qkv else 3584))
    if not qkv: srd(a, S_U, 512 * 3584)
    srd(a, S_WS, WS_SIZE)

    def dma():
        a(f's_add_u32 m0, s{sDS}, s{sDX}')
        a(f'buffer_load_dwordx4 v{vDX}, s[{S_X}:{S_X+3}], s{sXO} offen lds')
        a(f's_add_u32 m0, s{sDS}, s{sDW}')
        if qkv:
            a(f's_mov_b64 exec, s[{sEX}:{sEX+1}]')
            a(f'buffer_load_dwordx4 v{vDW}, s[{S_W}:{S_W+3}], s{sWO} offen lds')
            a('s_mov_b64 exec, -1')
        else:
            a(f'buffer_load_dwordx4 v{vDW}, s[{S_W}:{S_W+3}], s{sWO} offen lds')
            a(f's_add_u32 m0, m0, 8192')
            a(f'buffer_load_dwordx4 v{vDW}, s[{S_U}:{S_U+3}], s{sWO} offen lds')
        a(f's_add_u32 s{sXO}, s{sXO}, 64')
        a(f's_add_u32 s{sWO}, s{sWO}, {WSTEP}')
        a(f's_add_u32 s{sDS}, s{sDS}, {SLOT}')
        a(f's_cmp_eq_u32 s{sDS}, {SB+SLOT*R}')
        a(f's_cselect_b32 s{sDS}, {SB}, s{sDS}')
    for _ in range(R - 1): dma()

    if qkv:
        a(f's_and_b32 s{sT0}, s{sW}, 3\n s_lshl_b32 s{sT0}, s{sT0}, 11')
    else:
        a(f's_and_b32 s{sT0}, s{sW}, 1\n s_lshl_b32 s{sT0}, s{sT0}, 12')
    a(f'''v_and_b32 v1, 31, v0
          v_lshlrev_b32 v1, 6, v1
          v_add_u32 v1, s{sT0}, v1
          v_bfe_u32 v{vTMP}, v0, 2, 2
          v_lshrrev_b32 v{vTMP+1}, 5, v0
          v_xor_b32 v{vTMP}, v{vTMP}, v{vTMP+1}
          v_lshl_add_u32 v{vBX0}, v{vTMP}, 4, v1
          v_xor_b32 v{vBX1}, 32, v{vBX0}''')
    UP = 256 if qkv else 1024
    a(f'''v_bfe_u32 v1, v0, 2, 2
          v_lshlrev_b32 v1, 6, v1
          v_bfe_u32 v{vTMP}, v0, 4, 1
          v_lshl_add_u32 v1, v{vTMP}, 5, v1
          v_and_b32 v{vTMP}, 3, v0
          v_lshl_add_u32 v1, v{vTMP}, 3, v1
          v_lshrrev_b32 v{vTMP}, 5, v0
          v_lshl_add_u32 v1, v{vTMP}, {(2*UP).bit_length()-1}, v1''')
    if qkv:
        a(f'v_add_u32 v{vBWA}, 8192, v1')
    else:
        a(f'''s_lshr_b32 s{sT0}, s{sW}, 1
              s_lshl_b32 s{sT0}, s{sT0}, 8
              s_and_b32 s{sT1}, s{sW}, 1
              s_lshl_b32 s{sT1}, s{sT1}, 13
              s_add_u32 s{sT0}, s{sT0}, 8192
              v_add_u32 v1, s{sT0}, v1
              v_add_u32 v{vBWA}, s{sT1}, v1
              s_xor_b32 s{sT1}, s{sT1}, 8192
              v_add_u32 v{vBWB}, s{sT1}, v1''')
    a(f'v_lshlrev_b32 v1, 4, v0\n v_add_u32 v{vBT}, s{sDX}, v1')
    a(f's_mov_b32 s{sONE}, 0x3f803f80')
    for r in (vSX, vSXX, vCA, vCB): a(f'v_mov_b32 v{r}, 0')
    for r in range(FB, FB + 16): a(f'v_mov_b32 v{r}, 0')
    NACC = 32 if qkv else 64
    for r in range(ACC, ACC + NACC): a(f'v_mov_b32 v{r}, 0')

    def path(kind):
        nx = 2 if kind == 'gu' else 1
        nw = 1 if kind == 'v' else 2
        def reads(F, ks):
            vx = vX0 if ks == 0 else vX1
            for i in range(nx):
                a(f'ds_read_b128 {vr(F+4*i,4)}, v{vx} offset:{i*2048}')
            for j in range(nw):
                for t in range(2):
                    if kind == 'gu':
                        ad, off = (vWA, vWB)[j], (4*ks+t)*1024
                    else:
                        blk = 2 if kind == 'v' else j
                        ad, off = vWA, (4*ks+t)*256 + blk*2048
                    a(f'ds_read_b64_tr_b16 {vr(F+8+4*j+2*t,2)}, v{ad} offset:{off}')
            return nx + 2*nw
        def mm(F, extra=()):
            dots = []
            ncs = 1 if kind in ('gu', 'v') else 2
            for j in range(ncs):
                for r in range(4):
                    dots.append(f'v_dot2c_f32_bf16 v{(vCA,vCB)[j]}, s{sONE}, v{F+8+4*j+r}')
            dots += list(extra)
            ms = []
            for i in range(nx):
                for j in range(nw):
                    d = ACC + 16*(i*nw+j)
                    if kind == 'v':
                        ms.append(f'{MFMA} {vr(d,16)}, {vr(F+4*i,4)}, {vr(F+8+4*j,4)}, {vr(d,16)}')
                    else:
                        ms.append(f'{MFMA} {vr(d,16)}, {vr(F+8+4*j,4)}, {vr(F+4*i,4)}, {vr(d,16)}')
            per = -(-len(dots) // len(ms))
            for k, m in enumerate(ms):
                a(m)
                for d in dots[k*per:(k+1)*per]: a(d)
        def stage(vm, with_dma):
            a(f's_waitcnt vmcnt({vm})')
            a('s_barrier')
            a(f'v_add_u32 v{vX0}, s{sRS}, v{vBX0}')
            a(f'v_add_u32 v{vWA}, s{sRS}, v{vBWA}')
            if kind == 'gu': a(f'v_add_u32 v{vWB}, s{sRS}, v{vBWB}')
            a(f'v_add_u32 v{vT}, s{sRS}, v{vBT}')
            reads(FA, 0)
            a(f'ds_read_b128 {vr(FT,4)}, v{vT}')
            a(f'v_add_u32 v{vX1}, s{sRS}, v{vBX1}')
            if with_dma: dma()
            mm(FB)
            n = reads(FB, 1)
            a(f's_add_u32 s{sRS}, s{sRS}, {SLOT}')
            a(f's_cmp_eq_u32 s{sRS}, {SB+SLOT*R}')
            a(f's_cselect_b32 s{sRS}, {SB}, s{sRS}')
            a(f's_waitcnt lgkmcnt({n})')
            ex = []
            for r in range(4):
                ex.append(f'v_dot2c_f32_bf16 v{vSX}, s{sONE}, v{FT+r}')
                ex.append(f'v_dot2c_f32_bf16 v{vSXX}, v{FT+r}, v{FT+r}')
            mm(FA, ex)
            a('s_waitcnt lgkmcnt(0)')
        a(f's_mov_b32 s{sCNT}, {NS-R+1}')
        a.label(f'L_{P}_{kind}_loop')
        stage(D*(R-2), True)
        a(f's_sub_u32 s{sCNT}, s{sCNT}, 1')
        a(f's_cmp_lg_u32 s{sCNT}, 0')
        a(f's_cbranch_scc1 L_{P}_{kind}_loop')
        for s in range(NS-R+1, NS):
            stage(D*(NS-1-s), False)
        mm(FB)
        for r in (vSX, vSXX):
            a(f'v_add_f32_dpp v{r}, v{r}, v{r} quad_perm:[1,0,3,2] row_mask:0xf bank_mask:0xf')
        for r in (vSX, vSXX):
            a(f'v_add_f32_dpp v{r}, v{r}, v{r} quad_perm:[2,3,0,1] row_mask:0xf bank_mask:0xf')
        t0, t1 = vTMP, vTMP+1
        a(f'''v_mul_f32 v{vSX}, {f32bits(1/512):#x}, v{vSX}
              v_mul_f32 v{t0}, v{vSX}, v{vSX}
              v_mul_f32 v{vSXX}, {f32bits(1/512):#x}, v{vSXX}
              v_sub_f32 v{vSXX}, v{vSXX}, v{t0}
              v_max_f32 v{vSXX}, 0, v{vSXX}
              v_cvt_pk_bf16_f32 v{t0}, v{vSX}, v{vSXX}
              v_lshlrev_b32 v{vSX}, 16, v{t0}
              v_and_b32 v{vSXX}, 0xffff0000, v{t0}
              v_add_f32 v{vSXX}, {f32bits(1e-5):#x}, v{vSXX}
              v_cvt_pk_bf16_f32 v{t0}, v{vSXX}, v{vSXX}
              v_lshlrev_b32 v{t0}, 16, v{t0}
              v_sqrt_f32 v{t0}, v{t0}
              v_cvt_pk_bf16_f32 v{t0}, v{t0}, v{t0}
              v_lshlrev_b32 v{t0}, 16, v{t0}
              v_rcp_f32 v{vSXX}, v{t0}''')
        a(f'''v_and_b32 v{t0}, 0x3c, v0
              s_lshl_b32 s{sT0}, s{sW}, 6
              v_add_u32 v{t0}, s{sT0}, v{t0}
              ds_write_b32 v{t0}, v{vSX} offset:{STAT}
              ds_write_b32 v{t0}, v{vSXX} offset:{STAT+512}''')
        ncs = 1 if kind in ('gu', 'v') else 2
        for j in range(ncs):
            r = (vCA, vCB)[j]
            a(f'v_mov_b32 v{t0}, v{r}')
            a(f'v_permlane32_swap_b32 v{t0}, v{r}')
            a(f'v_add_f32 v{r}, v{r}, v{t0}')
        if kind != 'v':
            a(f'v_and_b32 v{t0}, 31, v0\n v_lshlrev_b32 v{t0}, 2, v{t0}')
            if kind == 'gu':
                a(f's_lshl_b32 s{sT0}, s{sW}, 7\n v_add_u32 v{t0}, s{sT0}, v{t0}')
                a(f'ds_write_b32 v{t0}, v{vCA} offset:{STAT+1024}')
            else:
                a(f'ds_write_b32 v{t0}, v{vCA} offset:{STAT+1024}')
                a(f'ds_write_b32 v{t0}, v{vCB} offset:{STAT+1024+128}')
        a('s_waitcnt lgkmcnt(0)')
        a('s_barrier')
        vH = vBX0
        vL16 = vBX1
        a(f'v_lshrrev_b32 v{vH}, 5, v0\n v_lshlrev_b32 v{vH}, 4, v{vH}')
        a(f'v_lshlrev_b32 v{vL16}, 4, v0')
        if kind == 'qk':
            vM, vR = vSX, vSXX
            a(f'''s_and_b32 s{sT0}, s{sW}, 3
                  s_lshl_b32 s{sT1}, s{sT0}, 7
                  v_and_b32 v{t0}, 31, v0
                  v_lshl_add_u32 v{t0}, v{t0}, 2, s{sT1}
                  ds_read_b32 v{vM}, v{t0} offset:{STAT}
                  ds_read_b32 v{vR}, v{t0} offset:{STAT+512}''')
            for j in range(2):
                for i in range(4):
                    a(f'ds_read_b128 {vr(FA+16*j+4*i,4)}, v{vH} offset:{STAT+1024+128*j+32*i}')
            a(f'''s_lshl_b32 s{sT1}, s{sCT}, 7
                  s_add_u32 s{sT0}, s{sT0}, s{sT1}
                  s_lshl_b32 s{sT1}, s{sRB}, 2
                  s_add_u32 s{sT0}, s{sT0}, s{sT1}
                  s_lshl_b32 s{sT0}, s{sT0}, 10''')
            a('s_waitcnt lgkmcnt(0)')
            qs = 0.25 * math.log2(math.e)
            a(f'v_mul_f32 v{t1}, {f32bits(qs):#x}, v{vR}')
            for j in range(2):
                rr = t1 if j == 0 else vR
                for r in range(16):
                    d = ACC + 16*j + r
                    a(f'v_fma_f32 v{d}, -v{vM}, v{FA+16*j+r}, v{d}')
                    a(f'v_mul_f32 v{d}, v{rr}, v{d}')
                for hh in range(2):
                    o = FA + 16*j + 4*hh
                    for r in range(4):
                        d = ACC + 16*j + 8*hh + 2*r
                        a(f'v_cvt_pk_bf16_f32 v{o+r}, v{d}, v{d+1}')
                    a(f's_add_u32 s{sT1}, s{sT0}, {(WS_Q, WS_K)[j] + hh*65536}')
                    a(f'buffer_store_dwordx4 {vr(o,4)}, v{vL16}, s[{S_WS}:{S_WS+3}], s{sT1} offen{st_flags}')
        elif kind == 'v':
            a(f'''s_and_b32 s{sT0}, s{sW}, 3
                  s_lshl_b32 s{sT1}, s{sT0}, 7
                  v_add_u32 v{t0}, s{sT1}, v{vH}''')
            for i in range(4):
                a(f'ds_read_b128 {vr(FA+4*i,4)}, v{t0} offset:{STAT+32*i}')
                a(f'ds_read_b128 {vr(FB+4*i,4)}, v{t0} offset:{STAT+512+32*i}')
            a(f'''v_bfe_u32 v{t0}, v0, 4, 1
                  v_lshlrev_b32 v{t0}, 16, v{t0}
                  v_lshl_add_u32 v{t0}, v{vH}, 4, v{t0}
                  v_and_b32 v{t1}, 15, v0
                  v_lshl_add_u32 v{t0}, v{t1}, 4, v{t0}
                  s_lshl_b32 s{sT1}, s{sCT}, 7
                  s_add_u32 s{sT0}, s{sT0}, s{sT1}
                  s_lshl_b32 s{sT1}, s{sRB}, 2
                  s_add_u32 s{sT0}, s{sT0}, s{sT1}
                  s_lshl_b32 s{sT0}, s{sT0}, 10
                  s_add_u32 s{sT0}, s{sT0}, {WS_V}''')
            a('s_waitcnt lgkmcnt(0)')
            for r in range(16):
                d = ACC + r
                a(f'v_fma_f32 v{d}, -v{FA+r}, v{vCA}, v{d}')
                a(f'v_mul_f32 v{d}, v{FB+r}, v{d}')
            for hh in range(2):
                o = FA + 4*hh
                for r in range(4):
                    d = ACC + 8*hh + 2*r
                    a(f'v_cvt_pk_bf16_f32 v{o+r}, v{d}, v{d+1}')
                a(f'buffer_store_dwordx4 {vr(o,4)}, v{t0}, s[{S_WS}:{S_WS+3}], s{sT0} offen offset:{hh*512}{st_flags}')
        else:
            vM0, vM1, vR0, vR1 = vSX, vSXX, vCA, vCB
            a(f'''s_and_b32 s{sT0}, s{sW}, 1
                  s_lshl_b32 s{sT1}, s{sT0}, 8
                  v_and_b32 v{t0}, 31, v0
                  v_lshl_add_u32 v{t0}, v{t0}, 2, s{sT1}
                  ds_read_b32 v{vM0}, v{t0} offset:{STAT}
                  ds_read_b32 v{vM1}, v{t0} offset:{STAT+128}
                  ds_read_b32 v{vR0}, v{t0} offset:{STAT+512}
                  ds_read_b32 v{vR1}, v{t0} offset:{STAT+512+128}
                  s_lshl_b32 s{sT1}, s{sW}, 7
                  v_add_u32 v{t0}, s{sT1}, v{vH}
                  v_xor_b32 v{t1}, 128, v{t0}''')
            for i in range(4):
                a(f'ds_read_b128 {vr(FA+4*i,4)}, v{t0} offset:{STAT+1024+32*i}')
            for i in range(4):
                a(f'ds_read_b128 {vr(FB+4*i,4)}, v{t1} offset:{STAT+1024+32*i}')
            sTA, sTB = sXO, sWO
            a(f'''s_cmp_eq_u32 s{sT0}, 0
                  s_cselect_b32 s{sTA}, 0, 0xff800000
                  s_cselect_b32 s{sTB}, 0xff800000, 0''')
            a(f'''s_lshl_b32 s{sT0}, s{sT0}, 1
                  s_lshl_b32 s{sT1}, s{sRB}, 2
                  s_add_u32 s{sT0}, s{sT0}, s{sT1}
                  s_mul_i32 s{sT0}, s{sT0}, 144
                  s_lshl_b32 s{sT1}, s{sCT}, 3
                  s_add_u32 s{sT0}, s{sT0}, s{sT1}
                  s_and_b32 s{sT1}, s{sW}, 6
                  s_add_u32 s{sT0}, s{sT0}, s{sT1}
                  s_lshl_b32 s{sT0}, s{sT0}, 10
                  s_add_u32 s{sT0}, s{sT0}, {WS_Z + 32*1024}''')
            a('s_waitcnt lgkmcnt(0)')
            a(f'v_mul_f32 v{vR0}, v{vR0}, v{vR0}\n v_mul_f32 v{vR1}, v{vR1}, v{vR1}')
            for i in range(2):
                m, rr = (vM0, vM1)[i], (vR0, vR1)[i]
                dA, dB = ACC + 32*i, ACC + 32*i + 16
                for r in range(16):
                    a(f'v_fma_f32 v{dA+r}, -v{m}, v{FA+r}, v{dA+r}')
                    a(f'v_fma_f32 v{dB+r}, -v{m}, v{FB+r}, v{dB+r}')
                    a(f'v_max_f32 v{dA+r}, s{sTA}, v{dA+r}')
                    a(f'v_max_f32 v{dB+r}, s{sTB}, v{dB+r}')
                    a(f'v_mul_f32 v{dA+r}, v{rr}, v{dA+r}')
                    a(f'v_mul_f32 v{dA+r}, v{dB+r}, v{dA+r}')
                for hh in range(2):
                    o = dB + 4*hh
                    for r in range(4):
                        d = dA + 8*hh + 2*r
                        a(f'v_cvt_pk_bf16_f32 v{o+r}, v{d}, v{d+1}')
                    a(f'buffer_store_dwordx4 {vr(o,4)}, v{vL16}, s[{S_WS}:{S_WS+3}], s{sT0} offen offset:{hh*1024}{st_flags}')
                if i == 0: a(f's_add_u32 s{sT0}, s{sT0}, {144*1024}')

    if qkv:
        a(f's_cmp_ge_u32 s{sW}, 4')
        a(f's_cbranch_scc1 L_{P}_vpath')
        path('qk')
        a(f's_branch L_{P}_done')
        a.label(f'L_{P}_vpath')
        path('v')
        a.label(f'L_{P}_done')
    else:
        path('gu')

def attention(a, st_flags='', ld_flags=''):
    S_WS = 12
    sW, sH, sQG, sC, sKO, sDS, sT0, sT1, sRSK, sRSV = 16, 17, 18, 19, 20, 22, 24, 25, 21, 23
    sMK = 26
    sQO = 28
    vL16, vKA, vVA, vKB, vVB, t0, t1 = 2, 3, 4, 5, 6, 7, 8
    Q, KF = 12, 16
    VF = (20, 28)
    PK = 36
    S = (48, 64)
    O = 80
    C = 96
    a(f's_load_dwordx2 s[{S_WS}:{S_WS+1}], s[0:1], {KA_WS}')
    wave_id(a, sW)
    a(f'v_lshlrev_b32 v{vL16}, 4, v0')
    a(f'''s_lshl_b32 s{sT0}, s{sH}, 6
          s_lshl_b32 s{sT1}, s{sQG}, 3
          s_add_u32 s{sT0}, s{sT0}, s{sT1}
          s_add_u32 s{sT0}, s{sT0}, s{sW}
          s_lshl_b32 s{sQO}, s{sT0}, 10
          s_lshl_b32 s{sKO}, s{sH}, 16
          s_lshl_b32 s{sDS}, s{sW}, 10
          s_add_u32 s{sKO}, s{sKO}, s{sDS}
          s_add_u32 s{sKO}, s{sKO}, {WS_K}''')
    a('s_waitcnt lgkmcnt(0)')
    srd(a, S_WS, WS_SIZE)
    a(f'buffer_load_dwordx4 {vr(Q,4)}, v{vL16}, s[{S_WS}:{S_WS+3}], s{sQO} offen{ld_flags}')
    def dma():
        a(f's_mov_b32 m0, s{sDS}')
        a(f's_add_u32 s{sT0}, s{sKO}, {WS_V-WS_K}')
        a(f'buffer_load_dwordx4 v{vL16}, s[{S_WS}:{S_WS+3}], s{sKO} offen lds{ld_flags}')
        a(f's_add_u32 m0, s{sDS}, 8192')
        a(f's_add_u32 s{sKO}, s{sKO}, 8192')
        a(f'buffer_load_dwordx4 v{vL16}, s[{S_WS}:{S_WS+3}], s{sT0} offen lds{ld_flags}')
        a(f's_add_u32 s{sDS}, s{sDS}, 16384')
        a(f's_and_b32 s{sDS}, s{sDS}, 0xffff')
    for _ in range(3): dma()
    a(f'''v_lshrrev_b32 v{t0}, 5, v0
          v_lshlrev_b32 v{t0}, 8, v{t0}
          v_and_b32 v{t1}, 15, v0
          v_lshl_add_u32 v{t0}, v{t1}, 4, v{t0}
          v_add_u32 v{vVB}, 8192, v{t0}
          v_mov_b32 v{vVA}, v{vVB}
          v_mov_b32 v{vKA}, v{vL16}
          s_mov_b32 s{sMK}, 0x0000ffff
          s_mov_b32 s{sMK+1}, 0x0000ffff
          s_mov_b32 s{sRSK}, 0
          s_mov_b32 s{sC}, 0''')
    for r in range(VF[0], VF[0] + 16): a(f'v_mov_b32 v{r}, 0x3f803f80')
    for r in range(O, O + 16): a(f'v_mov_b32 v{r}, 0')
    for r in range(PK + 4, PK + 8): a(f'v_mov_b32 v{r}, 0')
    a('s_waitcnt vmcnt(4)')
    a('s_barrier')
    a(f'ds_read_b128 {vr(KF,4)}, v{vKA}')
    a(f's_mov_b64 exec, s[{sMK}:{sMK+1}]')
    a(f'ds_read_b128 {vr(VF[0],4)}, v{vVA}')
    a(f'ds_read_b128 {vr(VF[0]+4,4)}, v{vVA} offset:512')
    a('s_mov_b64 exec, -1')
    a('s_waitcnt lgkmcnt(2)')
    a(f'{MFMA} {vr(S[1],16)}, {vr(KF,4)}, {vr(Q,4)}, 0')
    def rowmax(src, dst):
        a(f'v_max3_f32 v{dst}, v{src}, v{src+1}, v{src+2}')
        for r in range(3, 15, 2): a(f'v_max3_f32 v{dst}, v{dst}, v{src+r}, v{src+r+1}')
        a(f'v_max_f32 v{dst}, v{dst}, v{src+15}')
    def setC(m):
        a(f'v_mov_b32 v{t1}, v{m}')
        a(f'v_permlane32_swap_b32 v{t1}, v{m}')
        a(f'v_max_f32 v{m}, v{m}, v{t1}')
        for r in range(16): a(f'v_sub_f32 v{C+r}, 0, v{m}')
    rowmax(S[1], t0)
    setC(t0)
    a(f'{MFMA} {vr(S[0],16)}, {vr(KF,4)}, {vr(Q,4)}, {vr(C,16)}')
    a(f'ds_read_b128 {vr(KF,4)}, v{vKA} offset:1024')
    a('s_nop 11')
    a.label('L_att_loop')
    for j in range(8):
        cur, nxt = S[j % 2], S[(j + 1) % 2]
        vc, vn = VF[j % 2], VF[(j + 1) % 2]
        e = lambda r: a(f'v_exp_f32 v{cur+r}, v{cur+r}')
        c = lambda r: a(f'v_cvt_pk_bf16_f32 v{PK+r}, v{cur+2*r}, v{cur+2*r+1}')
        if j == 6:
            a(f's_add_u32 s{sRSK}, s{sRSK}, 16384')
            a(f's_and_b32 s{sRSK}, s{sRSK}, 0xffff')
            a(f's_cmp_lt_u32 s{sC}, 6')
            a('s_cbranch_scc1 L_att_w2')
            a('s_waitcnt vmcnt(0)')
            a.label('L_att_w2')
            a('s_waitcnt vmcnt(2)')
            a('s_barrier')
            a(f's_cmp_lt_u32 s{sC}, 5')
            a('s_cbranch_scc0 L_att_nodma')
            dma()
            a.label('L_att_nodma')
            a(f'v_add_u32 v{vKA}, s{sRSK}, v{vL16}')
        e(0); e(1)
        a(f'{MFMA} {vr(O,16)}, {vr(vn+4,4)}, {vr(PK+4,4)}, {vr(O,16)}')
        e(2); e(3); c(0)
        a('s_waitcnt lgkmcnt(0)')
        a(f'{MFMA} {vr(nxt,16)}, {vr(KF,4)}, {vr(Q,4)}, {vr(C,16)}')
        a(f'ds_read_b128 {vr(KF,4)}, v{vKA} offset:{((j+2)%8)*1024}')
        if j == 7: a(f'v_add_u32 v{vVA}, s{sRSK}, v{vVB}')
        a(f's_mov_b64 exec, s[{sMK}:{sMK+1}]')
        a(f'ds_read_b128 {vr(vn,4)}, v{vVA} offset:{((j+1)%8)*1024}')
        a(f'ds_read_b128 {vr(vn+4,4)}, v{vVA} offset:{((j+1)%8)*1024+512}')
        a('s_mov_b64 exec, -1')
        e(4); e(5); c(1); e(6); e(7); c(2); e(8); c(3); e(9); e(10)
        a(f'{MFMA} {vr(O,16)}, {vr(vc,4)}, {vr(PK,4)}, {vr(O,16)}')
        e(11); c(4); e(12); e(13); c(5); e(14); e(15); c(6)
        if j == 7:
            a(f's_add_u32 s{sC}, s{sC}, 1')
            a(f's_cmp_lt_u32 s{sC}, 8')
        c(7)
    a('s_cbranch_scc1 L_att_loop')
    a(f'{MFMA} {vr(O,16)}, {vr(VF[1]+4,4)}, {vr(PK+4,4)}, {vr(O,16)}')
    a('s_waitcnt lgkmcnt(0)')
    a(f'v_mov_b32 v{t0}, {f32bits(2.0**100):#x}')
    a(f'v_cmp_nlt_f32 vcc, v{O+8}, v{t0}')
    a('s_nop 4')
    a('s_cbranch_vccz L_att_fin')
    a(f'''s_lshl_b32 s{sKO}, s{sH}, 16
          s_add_u32 s{sKO}, s{sKO}, {WS_K}
          s_mov_b32 s{sC}, 0
          v_mov_b32 v{t0}, 0xff800000''')
    a.label('L_att_fb1')
    a(f'buffer_load_dwordx4 {vr(KF,4)}, v{vL16}, s[{S_WS}:{S_WS+3}], s{sKO} offen{ld_flags}')
    a('s_waitcnt vmcnt(0)')
    a(f'{MFMA} {vr(S[0],16)}, {vr(KF,4)}, {vr(Q,4)}, 0')
    for r in range(0, 16, 2): a(f'v_max3_f32 v{t0}, v{t0}, v{S[0]+r}, v{S[0]+r+1}')
    a(f'''s_add_u32 s{sKO}, s{sKO}, 1024
          s_add_u32 s{sC}, s{sC}, 1
          s_cmp_lt_u32 s{sC}, 64
          s_cbranch_scc1 L_att_fb1''')
    setC(t0)
    for r in range(O, O + 16): a(f'v_mov_b32 v{r}, 0')
    a(f'''s_sub_u32 s{sKO}, s{sKO}, 65536
          s_mov_b32 s{sC}, 0
          v_subrev_u32 v{vVA}, 8192, v{vVB}''')
    a.label('L_att_fb2')
    a(f's_add_u32 s{sT0}, s{sKO}, {WS_V-WS_K}')
    a(f'buffer_load_dwordx4 {vr(KF,4)}, v{vL16}, s[{S_WS}:{S_WS+3}], s{sKO} offen{ld_flags}')
    a(f's_mov_b64 exec, s[{sMK}:{sMK+1}]')
    a(f'buffer_load_dwordx4 {vr(VF[0],4)}, v{vVA}, s[{S_WS}:{S_WS+3}], s{sT0} offen{ld_flags}')
    a(f'buffer_load_dwordx4 {vr(VF[0]+4,4)}, v{vVA}, s[{S_WS}:{S_WS+3}], s{sT0} offen offset:512{ld_flags}')
    a('s_mov_b64 exec, -1')
    a('s_waitcnt vmcnt(0)')
    a(f'{MFMA} {vr(S[0],16)}, {vr(KF,4)}, {vr(Q,4)}, {vr(C,16)}')
    for r in range(16): a(f'v_exp_f32 v{S[0]+r}, v{S[0]+r}')
    for r in range(8): a(f'v_cvt_pk_bf16_f32 v{PK+r}, v{S[0]+2*r}, v{S[0]+2*r+1}')
    a(f'{MFMA} {vr(O,16)}, {vr(VF[0],4)}, {vr(PK,4)}, {vr(O,16)}')
    a(f'{MFMA} {vr(O,16)}, {vr(VF[0]+4,4)}, {vr(PK+4,4)}, {vr(O,16)}')
    a(f'''s_add_u32 s{sKO}, s{sKO}, 1024
          s_add_u32 s{sC}, s{sC}, 1
          s_cmp_lt_u32 s{sC}, 64
          s_nop 7
          s_cbranch_scc1 L_att_fb2''')
    a('s_nop 7')
    a.label('L_att_fin')
    a(f'v_rcp_f32 v{t0}, v{O+8}')
    a(f'''s_lshl_b32 s{sT0}, s{sQG}, 3
          s_add_u32 s{sT0}, s{sT0}, s{sW}
          s_mul_i32 s{sT0}, s{sT0}, 144
          s_add_u32 s{sT0}, s{sT0}, s{sH}
          s_lshl_b32 s{sT0}, s{sT0}, 10
          s_add_u32 s{sT0}, s{sT0}, {WS_Z}''')
    for r in range(8): a(f'v_mul_f32 v{O+r}, v{t0}, v{O+r}')
    for r in range(4): a(f'v_cvt_pk_bf16_f32 v{PK+r}, v{O+2*r}, v{O+2*r+1}')
    a(f'buffer_store_dwordx4 {vr(PK,4)}, v{vL16}, s[{S_WS}:{S_WS+3}], s{sT0} offen{st_flags}')

def dw(a):
    S_X, S_WO, S_WS, S_WD, S_OUT = 4, 8, 12, 28, 36
    sW, sRT, sNT, sZ0, sZ1, sWOFF, sLB, sT0, sT1 = 16, 17, 18, 19, 20, 21, 22, 24, 25
    vL16, vDW, vRA, vRB, t0, t1, vXO = 2, 3, 4, 5, 6, 7, 8
    XR = 12
    WF = 16
    ZF = 24
    ACC = 64
    REG = 10240
    a(f's_load_dwordx2 s[{S_X}:{S_X+1}], s[0:1], {KA_X}')
    a(f's_load_dwordx2 s[{S_WO}:{S_WO+1}], s[0:1], {KA_WO}')
    a(f's_load_dwordx2 s[{S_WD}:{S_WD+1}], s[0:1], {KA_D}')
    a(f's_load_dwordx2 s[{S_OUT}:{S_OUT+1}], s[0:1], {KA_OUT}')
    a(f's_load_dwordx2 s[{S_WS}:{S_WS+1}], s[0:1], {KA_WS}')
    wave_id(a, sW)
    a(f'v_lshlrev_b32 v{vL16}, 4, v0')
    a(f'''v_lshrrev_b32 v{t0}, 5, v0
          v_lshlrev_b32 v{t0}, 2, v{t0}
          v_bfe_u32 v{t1}, v0, 2, 2
          v_add_u32 v{t0}, v{t0}, v{t1}
          v_lshlrev_b32 v{t0}, 10, v{t0}
          v_bfe_u32 v{t1}, v0, 4, 1
          v_lshl_add_u32 v{t0}, v{t1}, 6, v{t0}
          v_and_b32 v{t1}, 3, v0
          v_lshl_add_u32 v{t0}, v{t1}, 4, v{t0}
          s_lshl_b32 s{sT0}, s{sNT}, 7
          v_add_u32 v{vDW}, s{sT0}, v{t0}''')
    a(f'''s_bfe_u32 s{sT0}, s{sW}, 0x10001
          s_lshl_b32 s{sT1}, s{sRT}, 1
          s_add_u32 s{sT0}, s{sT0}, s{sT1}
          s_xor_b32 s{sT1}, s{sT0}, 1
          s_mul_i32 s{sZ0}, s{sT0}, 144
          s_mul_i32 s{sZ1}, s{sT1}, 144
          s_add_u32 s{sZ0}, s{sZ0}, s{sW}
          s_add_u32 s{sZ1}, s{sZ1}, s{sW}
          s_lshl_b32 s{sZ0}, s{sZ0}, 10
          s_lshl_b32 s{sZ1}, s{sZ1}, 10
          s_add_u32 s{sZ0}, s{sZ0}, {WS_Z}
          s_add_u32 s{sZ1}, s{sZ1}, {WS_Z}
          s_lshl_b32 s{sWOFF}, s{sW}, 14
          s_mul_i32 s{sLB}, s{sW}, {REG}''')
    a(f'''v_and_b32 v{t0}, 31, v0
          s_lshl_b32 s{sT0}, s{sT0}, 5
          v_add_u32 v{t0}, s{sT0}, v{t0}
          v_lshlrev_b32 v{t0}, 10, v{t0}
          v_lshrrev_b32 v{t1}, 5, v0
          v_lshl_add_u32 v{t0}, v{t1}, 4, v{t0}
          s_lshl_b32 s{sT0}, s{sNT}, 7
          s_lshr_b32 s{sT1}, s{sW}, 2
          s_lshl_b32 s{sT1}, s{sT1}, 6
          s_add_u32 s{sT0}, s{sT0}, s{sT1}
          s_and_b32 s{sT1}, s{sW}, 1
          s_lshl_b32 s{sT1}, s{sT1}, 5
          s_add_u32 s{sT0}, s{sT0}, s{sT1}
          v_add_u32 v{vXO}, s{sT0}, v{t0}''')
    a('s_waitcnt lgkmcnt(0)')
    srd(a, S_X, 2048*1024); srd(a, S_WO, 512*1024); srd(a, S_WD, 1792*1024); srd(a, S_OUT, 2048*1024); srd(a, S_WS, WS_SIZE)
    a(f'buffer_load_dwordx4 {vr(XR,4)}, v{vXO}, s[{S_X}:{S_X+3}], 0 offen')
    NI = 18
    def issue(i):
        sl = i % 4
        S = S_WO if i < 4 else S_WD
        woff = (i if i < 4 else i - 4) * 8 * 16384
        a(f's_add_u32 m0, s{sLB}, {sl*2048}')
        a(f's_add_u32 s{sT0}, s{sWOFF}, {woff}')
        a(f'buffer_load_dwordx4 v{vDW}, s[{S}:{S+3}], s{sT0} offen lds')
        a(f's_add_u32 m0, s{sLB}, {sl*2048+1024}')
        a(f's_add_u32 s{sT0}, s{sWOFF}, {woff+8192}')
        a(f'buffer_load_dwordx4 v{vDW}, s[{S}:{S+3}], s{sT0} offen lds')
        a(f'buffer_load_dwordx4 {vr(ZF+8*sl,4)}, v{vL16}, s[{S_WS}:{S_WS+3}], s{sZ0} offen')
        a(f'buffer_load_dwordx4 {vr(ZF+8*sl+4,4)}, v{vL16}, s[{S_WS}:{S_WS+3}], s{sZ1} offen')
        a(f's_add_u32 s{sZ0}, s{sZ0}, 8192')
        a(f's_add_u32 s{sZ1}, s{sZ1}, 8192')
    for i in range(3): issue(i)
    a(f'''v_lshrrev_b32 v{t0}, 5, v0
          v_lshlrev_b32 v{t0}, 9, v{t0}
          v_bfe_u32 v{t1}, v0, 2, 2
          v_lshl_add_u32 v{t0}, v{t1}, 6, v{t0}
          v_bfe_u32 v{t1}, v0, 4, 1
          s_and_b32 s{sT0}, s{sW}, 1
          v_xor_b32 v{t1}, s{sT0}, v{t1}
          v_lshl_add_u32 v{t0}, v{t1}, 5, v{t0}
          v_and_b32 v{t1}, 1, v0
          v_lshl_add_u32 v{t0}, v{t1}, 4, v{t0}
          v_bfe_u32 v{t1}, v0, 1, 1
          v_lshl_add_u32 v{t0}, v{t1}, 3, v{t0}
          s_lshr_b32 s{sT0}, s{sW}, 2
          s_lshl_b32 s{sT0}, s{sT0}, 8
          v_add_u32 v{t0}, s{sT0}, v{t0}
          v_xor_b32 v{t1}, 256, v{t0}
          v_add_u32 v{vRA}, s{sLB}, v{t0}
          v_add_u32 v{vRB}, s{sLB}, v{t1}''')
    for i in range(NI):
        sl = i % 4
        a(f's_waitcnt vmcnt({4*min(2, NI-1-i)})')
        for j in range(2):
            for t in range(2):
                a(f'ds_read_b64_tr_b16 {vr(WF+4*j+2*t,2)}, v{(vRA,vRB)[j]} offset:{sl*2048+t*1024}')
        if i + 3 < NI: issue(i + 3)
        for j in range(2):
            a(f's_waitcnt lgkmcnt({2-2*j})')
            for mi in range(2):
                d = ACC + 16*(2*j + mi)
                c = '0' if i == 0 else vr(d,16)
                a(f'{MFMA} {vr(d,16)}, {vr(WF+4*j,4)}, {vr(ZF+8*sl+4*mi,4)}, {c}')
    a(f'v_add_u32 v{vRA}, s{sLB}, v{vL16}')
    a(f's_xor_b32 s{sT0}, s{sW}, 4\n s_mul_i32 s{sT0}, s{sT0}, {REG}\n v_add_u32 v{vRB}, s{sT0}, v{vL16}')
    for q in range(8):
        a(f'ds_write_b128 v{vRA}, {vr(ACC+32+4*q,4)} offset:{q*1024}')
    a('s_waitcnt lgkmcnt(0)')
    a('s_barrier')
    for q in range(8):
        a(f'ds_read_b128 {vr(ZF+4*q,4)}, v{vRB} offset:{q*1024}')
    for q in range(7, -1, -1):
        pass
    a('s_waitcnt lgkmcnt(0)')
    for r in range(8, 32): a(f'v_add_f32 v{ACC+r}, v{ACC+r}, v{ZF+r}')
    for q in range(2, 8):
        a(f'ds_write_b128 v{vRB}, {vr(ACC+4*q,4)} offset:{q*1024}')
    for r in range(8): a(f'v_add_f32 v{ACC+r}, v{ACC+r}, v{ZF+r}')
    a('s_waitcnt lgkmcnt(0)')
    a('s_barrier')
    for p in range(1, 4):
        a(f's_xor_b32 s{sT0}, s{sW}, {4 ^ p}\n s_mul_i32 s{sT0}, s{sT0}, {REG}\n v_add_u32 v{t0}, s{sT0}, v{vL16}')
        a(f'ds_read_b128 {vr(ZF+8*p,4)}, v{t0} offset:{2*p*1024}')
        a(f'ds_read_b128 {vr(ZF+8*p+4,4)}, v{t0} offset:{(2*p+1)*1024}')
    for r in range(4):
        a(f'v_lshlrev_b32 v{ZF+2*r}, 16, v{XR+r}')
        a(f'v_and_b32 v{ZF+2*r+1}, 0xffff0000, v{XR+r}')
    for r in range(8): a(f'v_add_f32 v{ACC+r}, v{ACC+r}, v{ZF+r}')
    a('s_waitcnt lgkmcnt(0)')
    for p in range(1, 4):
        for r in range(8): a(f'v_add_f32 v{ACC+r}, v{ACC+r}, v{ZF+8*p+r}')
    for r in range(4): a(f'v_cvt_pk_bf16_f32 v{XR+r}, v{ACC+2*r}, v{ACC+2*r+1}')
    a(f'buffer_store_dwordx4 {vr(XR,4)}, v{vXO}, s[{S_OUT}:{S_OUT+3}], 0 offen')
```

```python
import sys
from roles import *
NAME = 'parallel_sum__mha_block__glu_gated_reglu__prompt'
HDR = open('cdna_kernels/%s.s.ref' % NAME).read().split('; Override launch')[0]

def kd(name, vg=128, sg=64):
    return f'''.section .rodata,"a"
.p2align 6
.amdhsa_kernel {name}
  .amdhsa_next_free_vgpr {vg}
  .amdhsa_next_free_sgpr {sg}
  .amdhsa_accum_offset {vg}
  .amdhsa_group_segment_fixed_size 0
  .amdhsa_kernarg_size 80
  .amdhsa_user_sgpr_count 2
  .amdhsa_user_sgpr_kernarg_segment_ptr 1
  .amdhsa_system_sgpr_workgroup_id_x 1
.end_amdhsa_kernel
'''
def begin(a, name):
    a.l += ['.text', f'.globl {name}', '.p2align 8', f'.type {name},@function', f'{name}:']

def build(extra_launch=0):
    a = Asm()
    begin(a, 'k1_kernel')
    a('''s_cmp_ge_u32 s2, 480
         s_cbranch_scc1 L_k1_end
         s_and_b32 s3, s2, 7
         s_bfe_u32 s19, s2, 0x50003
         s_lshr_b32 s17, s3, 1
         s_lshl_b32 s17, s17, 2
         s_and_b32 s18, s19, 3
         s_add_u32 s17, s17, s18
         s_lshr_b32 s19, s19, 2
         s_and_b32 s3, s3, 1
         s_cmp_ge_u32 s2, 256
         s_cbranch_scc1 L_k1_gu
         s_lshl_b32 s18, s3, 3
         s_add_u32 s18, s18, s19''')
    gemm_x(a, 'qkv')
    a('s_endpgm')
    a.label('L_k1_gu')
    a('s_mul_i32 s18, s3, 7\n s_add_u32 s18, s18, s19')
    gemm_x(a, 'gu')
    a.label('L_k1_end')
    a('s_endpgm')
    begin(a, 'k2_kernel')
    a('''s_cmp_ge_u32 s2, 256
         s_cbranch_scc1 L_k2_end
         s_and_b32 s17, s2, 7
         s_lshl_b32 s17, s17, 2
         s_lshr_b32 s3, s2, 6
         s_add_u32 s17, s17, s3
         s_bfe_u32 s18, s2, 0x30003''')
    attention(a)
    a.label('L_k2_end')
    a('s_endpgm')
    begin(a, 'k3_kernel')
    a('''s_cmp_ge_u32 s2, 256
         s_cbranch_scc1 L_k3_end
         s_bfe_u32 s17, s2, 0x20001
         s_lshl_b32 s17, s17, 3
         s_bfe_u32 s3, s2, 0x30003
         s_add_u32 s17, s17, s3
         s_and_b32 s18, s2, 1
         s_lshl_b32 s18, s18, 2
         s_lshr_b32 s3, s2, 6
         s_add_u32 s18, s18, s3''')
    dw(a)
    a.label('L_k3_end')
    a('s_endpgm')
    if extra_launch:
        begin(a, 'nop_kernel')
        a('s_endpgm')
    lines = fix_hazards(a.l)
    for p in check_branches(lines): print('BRANCH HAZARD', p, file=sys.stderr)
    out = HDR
    out += '; @launch kernel=k1_kernel grid=(480,1,1) block=(512,1,1) lds=81920\n'
    out += '; @launch kernel=k2_kernel grid=(256,1,1) block=(512,1,1) lds=65536\n'
    out += '; @launch kernel=k3_kernel grid=(256,1,1) block=(512,1,1) lds=81920\n'
    for i in range(extra_launch):
        out += '; @launch kernel=nop_kernel grid=(256,1,1) block=(64,1,1) lds=0\n'
    out += '.amdgcn_target "amdgcn-amd-amdhsa--gfx950"\n'
    out += '\n'.join(lines) + '\n'
    out += kd('k1_kernel') + kd('k2_kernel') + kd('k3_kernel')
    if extra_launch: out += kd('nop_kernel')
    return out

if __name__ == '__main__':
    open('cdna_kernels/%s.s' % NAME, 'w').write(build())
    open('v1_nop2.s', 'w').write(build(2))
    open('v1_nop6.s', 'w').write(build(6))
```

```python
import sys, struct, math
from dsl import *

NAME = 'parallel_sum__mha_block__glu_gated_reglu__prompt'
WS_K = 0
WS_V = 2 << 20
WS_XN = 4 << 20
WS_Z = 6 << 20
WS_FL = 15 << 20
FL_LN, FL_QKV, FL_H, FL_O = WS_FL, WS_FL + 4096, WS_FL + 8192, WS_FL + 12288
WS_SIZE = 16 << 20
KA_X, KA_WQKV, KA_WO, KA_G, KA_U, KA_D, KA_OUT, KA_DBG, KA_WS = 0, 8, 16, 32, 40, 48, 56, 64, 72
MFMA = 'v_mfma_f32_32x32x16_bf16'
MF16 = 'v_mfma_f32_16x16x32_bf16'
WT = ' sc0 sc1'
SPIN_MAX = 40000

S_X, S_W, S_WS, S_U, S_OUT, S_DBG, S_WO, S_WD = 4, 8, 12, 28, 36, 40, 44, 48
sW, sRB, sCT, sCNT = 16, 17, 18, 19
sT0, sT1, sNON, sSPIN = 24, 25, 52, 53

def f32bits(x): return struct.unpack('<I', struct.pack('<f', x))[0]
def srd(a, d, size):
    a(f's_mov_b32 s{d+2}, {size}')
    a(f's_mov_b32 s{d+3}, 0x00020000')

class G:
    instr = False
def stamp(a, i):
    if G.instr:
        a(f's_memrealtime s[{64+2*i}:{65+2*i}]')
        a('s_waitcnt lgkmcnt(0)')
def stamp_begin(a):
    if G.instr:
        a('s_memrealtime s[64:65]')
        a('s_memtime s[60:61]')
        for i in range(1, 12): a(f's_mov_b64 s[{64+2*i}:{65+2*i}], 0')
        a('s_waitcnt lgkmcnt(0)')
def stamp_end(a):
    if G.instr:
        a('s_waitcnt vmcnt(0) lgkmcnt(0)')
        a('s_memrealtime s[86:87]')
        a('s_memtime s[62:63]')
        a('s_getreg_b32 s88, hwreg(HW_REG_HW_ID)')
        a('s_getreg_b32 s89, hwreg(HW_REG_XCC_ID)')
        a('s_waitcnt lgkmcnt(0)')
        a(f's_mov_b32 s{S_WS+2}, 0x10000000')
        a(f's_lshl_b32 s90, s2, 3')
        a(f's_add_u32 s90, s90, s{sW}')
        a(f's_lshl_b32 s90, s90, 6')
        a(f's_add_u32 s90, s90, {32<<20}')
        a('v_mov_b32 v1, 0')
        vals = ['s60', 's62', 's88', 's89'] + [f's{64+2*i}' for i in range(12)]
        for j in range(4):
            for r in range(4): a(f'v_mov_b32 v{4+r}, {vals[4*j+r]}')
            a(f'buffer_store_dwordx4 v[4:7], v1, s[{S_WS}:{S_WS+3}], s90 offen offset:{16*j}')
            a('s_nop 1')

_uid = [0]
def uid(p):
    _uid[0] += 1
    return f'L_{p}{_uid[0]}'

def nonce_issue(a, vN, vZ):
    a(f'buffer_load_dword v{vN}, v{vZ}, s[{S_DBG}:{S_DBG+3}], 0 offen{WT}')
def nonce_finish(a, vN, vZ):
    l, d = uid('np'), uid('nd')
    a(f's_mov_b32 s{sSPIN}, {SPIN_MAX}')
    a.label(l)
    a(f'v_readfirstlane_b32 s{sNON}, v{vN}')
    a(f's_cmp_lg_u32 s{sNON}, 0')
    a(f's_cbranch_scc1 {d}')
    a(f's_sub_u32 s{sSPIN}, s{sSPIN}, 1')
    a(f's_cbranch_scc1 {d}')
    a('s_sleep 2')
    nonce_issue(a, vN, vZ)
    a('s_waitcnt vmcnt(0)')
    a(f's_branch {l}')
    a.label(d)
def flag_set(a, sOFF, vA, vB):
    a(f'v_mov_b32 v{vA}, s{sNON}')
    a(f'v_mov_b32 v{vB}, 0')
    a('s_mov_b64 exec, 1')
    a(f'buffer_store_dword v{vA}, v{vB}, s[{S_WS}:{S_WS+3}], s{sOFF} offen{WT}')
    a('s_mov_b64 exec, -1')
def flag_wait(a, sOFF, n, vA, vB, sleep=1):
    l, d = uid('fw'), uid('fd')
    a(f'v_min_u32 v{vB}, {n-1}, v0')
    a(f'v_lshlrev_b32 v{vB}, 2, v{vB}')
    a(f's_mov_b32 s{sSPIN}, {SPIN_MAX}')
    a.label(l)
    a(f'buffer_load_dword v{vA}, v{vB}, s[{S_WS}:{S_WS+3}], s{sOFF} offen{WT}')
    a('s_waitcnt vmcnt(0)')
    a(f'v_cmp_ne_u32 vcc, s{sNON}, v{vA}')
    a('s_nop 4')
    a(f's_cbranch_vccz {d}')
    a(f's_sub_u32 s{sSPIN}, s{sSPIN}, 1')
    a(f's_cbranch_scc1 {d}')
    a(f's_sleep {sleep}')
    a(f's_branch {l}')
    a.label(d)

def x_dma_voff(a, vD, t):
    a(f'''v_lshrrev_b32 v1, 2, v0
          s_lshl_b32 s{sT0}, s{sW}, 4
          v_add_u32 v1, s{sT0}, v1
          v_lshlrev_b32 v1, 10, v1
          v_lshrrev_b32 v{t}, 4, v0
          v_xor_b32 v{t}, v{t}, v0
          v_and_b32 v{t}, 3, v{t}
          v_lshl_add_u32 v{vD}, v{t}, 4, v1''')
def x_read_base(a, vB0, vB1, t, sBLK):
    a(f'''v_and_b32 v1, 31, v0
          v_lshlrev_b32 v1, 6, v1
          v_add_u32 v1, s{sBLK}, v1
          v_bfe_u32 v{t}, v0, 2, 2
          v_lshrrev_b32 v{t+1}, 5, v0
          v_xor_b32 v{t}, v{t}, v{t+1}
          v_lshl_add_u32 v{vB0}, v{t}, 4, v1
          v_xor_b32 v{vB1}, 32, v{vB0}''')
def w_lane_part(a, t, UP):
    a(f'''v_bfe_u32 v1, v0, 2, 2
          v_lshlrev_b32 v1, 6, v1
          v_bfe_u32 v{t}, v0, 4, 1
          v_lshl_add_u32 v1, v{t}, 5, v1
          v_and_b32 v{t}, 3, v0
          v_lshl_add_u32 v1, v{t}, 3, v1
          v_lshrrev_b32 v{t}, 5, v0
          v_lshl_add_u32 v1, v{t}, {(2*UP).bit_length()-1}, v1''')

def role_a(a, opt):
    SLOT, R, NS, D = 14336, 5, 16, 2
    SB = 0
    STAT = 73728
    ONES = 65536
    sXO, sWO, sDS, sRS = 20, 21, 22, 23
    sEX = 26
    sDX, sDW, sMB = 33, 34, 35
    vDX, vDW = 2, 3
    vBX0, vBX1, vBW0, vBW1, vBT = 4, 5, 6, 7, 8
    vX0, vX1, vW0, vW1, vT = 9, 10, 11, 12, 13
    t0, t1 = 14, 15
    vN, vZ = 16, 17
    FT = 20
    FA, FB = 24, 36
    ONE, SEL = 48, 52
    ASX, ASQ, ACS = 56, 60, 96
    ACC = 64
    a(f's_setprio {opt.get("prio_qkv", 3)}')
    x_dma_voff(a, vDX, t0)
    a(f'''s_mul_i32 s{sT0}, s{sW}, 12
          v_lshrrev_b32 v1, 2, v0
          v_add_u32 v1, s{sT0}, v1
          v_and_b32 v{t0}, 31, v1
          v_mul_u32_u24 v{t0}, 3072, v{t0}
          v_lshrrev_b32 v1, 5, v1
          v_lshl_add_u32 v{t0}, v1, 10, v{t0}
          v_and_b32 v1, 3, v0
          v_lshl_add_u32 v{t0}, v1, 4, v{t0}
          s_lshl_b32 s{sT0}, s{sCT}, 6
          v_add_u32 v{vDW}, s{sT0}, v{t0}
          s_mov_b32 s{sEX}, -1
          s_mov_b32 s{sEX+1}, 0xffff
          s_mul_i32 s{sDW}, s{sW}, 768
          s_add_u32 s{sDW}, s{sDW}, 8192
          s_lshl_b32 s{sDX}, s{sW}, 10
          s_lshl_b32 s{sXO}, s{sRB}, 17
          s_mov_b32 s{sWO}, 0
          s_mov_b32 s{sDS}, {SB}
          s_mov_b32 s{sRS}, {SB}
          s_and_b32 s{sMB}, s{sW}, 3''')
    a('s_waitcnt lgkmcnt(0)')
    srd(a, S_X, 2048*1024); srd(a, S_W, 512*3072); srd(a, S_WS, WS_SIZE); srd(a, S_DBG, 256)
    def dma():
        a(f's_add_u32 m0, s{sDS}, s{sDX}')
        a(f's_mov_b64 exec, -1')
        a(f'buffer_load_dwordx4 v{vDX}, s[{S_X}:{S_X+3}], s{sXO} offen lds')
        a(f's_add_u32 m0, s{sDS}, s{sDW}')
        a(f's_mov_b64 exec, s[{sEX}:{sEX+1}]')
        a(f'buffer_load_dwordx4 v{vDW}, s[{S_W}:{S_W+3}], s{sWO} offen lds')
        a('s_mov_b64 exec, -1')
        a(f's_add_u32 s{sXO}, s{sXO}, 64')
        a(f's_add_u32 s{sWO}, s{sWO}, {32*3072}')
        a(f's_add_u32 s{sDS}, s{sDS}, {SLOT}')
        a(f's_cmp_eq_u32 s{sDS}, {SB+SLOT*R}')
        a(f's_cselect_b32 s{sDS}, {SB}, s{sDS}')
    a(f'v_mov_b32 v{vZ}, 0')
    a(f's_or_b32 s{sT0}, s2, s{sW}')
    a(f's_cmp_lg_u32 s{sT0}, 0')
    a('s_cbranch_scc1 L_a_nonw')
    a(f's_memrealtime s[{sT0}:{sT1}]')
    a('s_waitcnt lgkmcnt(0)')
    a(f's_or_b32 s{sT0}, s{sT0}, 1')
    a(f'v_mov_b32 v{vN}, s{sT0}')
    a(f'buffer_store_dword v{vN}, v{vZ}, s[{S_DBG}:{S_DBG+3}], 0 offen{WT}')
    a.label('L_a_nonw')
    for _ in range(R - 1): dma()
    stamp(a, 1)
    a(f's_lshl_b32 s{sT1}, s{sMB}, 11')
    x_read_base(a, vBX0, vBX1, t0, sT1)
    a(f'''s_and_b32 s{sT0}, s{sMB}, 2
          s_lshl_b32 s{sT0}, s{sT0}, 4
          v_xor_b32 v{vBX0}, s{sT0}, v{vBX0}
          v_xor_b32 v{vBX1}, s{sT0}, v{vBX1}''')
    w_lane_part(a, t0, 256)
    a(f'''s_lshl_b32 s{sT0}, s{sT0}, 5
          s_and_b32 s{sT1}, s{sMB}, 1
          s_cmp_ge_u32 s{sW}, 4
          s_cselect_b32 s{sT1}, 2, s{sT1}
          s_lshl_b32 s{sT1}, s{sT1}, 11
          s_add_u32 s{sT0}, s{sT0}, s{sT1}
          v_add_u32 v1, s{sT0}, v1
          v_add_u32 v{vBW0}, 8192, v1
          v_xor_b32 v1, 1024, v1
          v_add_u32 v{vBW1}, 8192, v1''')
    vBW0b, vBW1b, vW0b, vW1b = 100, 101, 102, 103
    a(f'v_xor_b32 v{vBW0b}, 2048, v{vBW0}\n v_xor_b32 v{vBW1b}, 2048, v{vBW1}')
    a(f'''v_bfe_u32 v{t0}, v0, 4, 1
          v_mul_u32_u24 v{t0}, 3, v{t0}
          v_lshrrev_b32 v{t1}, 5, v0
          v_xor_b32 v{t0}, v{t0}, v{t1}
          v_bfe_u32 v{t1}, v0, 2, 2
          v_xor_b32 v{t0}, v{t0}, v{t1}
          v_and_b32 v1, 15, v0
          v_lshlrev_b32 v1, 6, v1
          v_lshl_add_u32 v1, v{t0}, 4, v1
          v_add_u32 v{vBT}, s{sDX}, v1''')
    a(f'''v_and_b32 v{t0}, 15, v0
          v_bfe_u32 v{t1}, v0, 4, 1
          v_cmp_eq_u32 vcc, v{t0}, v{t1}
          v_mov_b32 v{ONE}, 0x3f803f80
          v_cndmask_b32 v{SEL}, 0, v{ONE}, vcc''')
    for r in range(1, 4): a(f'v_mov_b32 v{ONE+r}, v{ONE}\n v_mov_b32 v{SEL+r}, v{SEL}')
    for r in list(range(ASX, ASX+8)) + list(range(ACS, ACS+4)) + list(range(FB, FB+12)) + list(range(ACC, ACC+32)):
        a(f'v_mov_b32 v{r}, 0')

    def qkv_path(kind):
        nw = 2 if kind == 'qk' else 1
        def reads(F, ph):
            a(f'ds_read_b128 {vr(F,4)}, v{(vX0,vX1)[ph]}')
            for j in range(nw):
                ad = ((vW0, vW1), (vW0b, vW1b))[j][ph]
                for t in range(2):
                    a(f'ds_read_b64_tr_b16 {vr(F+4+4*j+2*t,2)}, v{ad} offset:{t*256}')
            return 1 + 2*nw
        def mm(F):
            for j in range(nw):
                d = ACC + 16*j
                if kind == 'v': a(f'{MFMA} {vr(d,16)}, {vr(F,4)}, {vr(F+4,4)}, {vr(d,16)}')
                else: a(f'{MFMA} {vr(d,16)}, {vr(F+4+4*j,4)}, {vr(F,4)}, {vr(d,16)}')
        def stage(vm, with_dma):
            a(f'v_add_u32 v{vX0}, s{sRS}, v{vBX0}')
            a(f'v_add_u32 v{vW0}, s{sRS}, v{vBW0}')
            if nw == 2: a(f'v_add_u32 v{vW0b}, s{sRS}, v{vBW0b}')
            a(f'v_add_u32 v{vT}, s{sRS}, v{vBT}')
            a(f's_waitcnt vmcnt({vm}) lgkmcnt(0)')
            a('s_barrier')
            reads(FA, 0)
            a(f'ds_read_b128 {vr(FT,4)}, v{vT}')
            mm(FB)
            a(f'v_add_u32 v{vX1}, s{sRS}, v{vBX1}')
            a(f'v_add_u32 v{vW1}, s{sRS}, v{vBW1}')
            if nw == 2: a(f'v_add_u32 v{vW1b}, s{sRS}, v{vBW1b}')
            n = reads(FB, 1)
            if with_dma: dma()
            a(f's_add_u32 s{sRS}, s{sRS}, {SLOT}')
            a(f's_cmp_eq_u32 s{sRS}, {SB+SLOT*R}')
            a(f's_cselect_b32 s{sRS}, {SB}, s{sRS}')
            a(f's_waitcnt lgkmcnt({n})')
            mm(FA)
            a(f'{MF16} {vr(ACS,4)}, {vr(SEL,4)}, {vr(FA+4,4)}, {vr(ACS,4)}')
            a(f'{MF16} {vr(ASX,4)}, {vr(ONE,4)}, {vr(FT,4)}, {vr(ASX,4)}')
            a(f'{MF16} {vr(ASQ,4)}, {vr(FT,4)}, {vr(FT,4)}, {vr(ASQ,4)}')
        a(f's_mov_b32 s{sCNT}, {NS-R+1}')
        a.label(f'L_a_{kind}_loop')
        stage(D*(R-2), True)
        a(f's_sub_u32 s{sCNT}, s{sCNT}, 1')
        a(f's_cmp_lg_u32 s{sCNT}, 0')
        a(f's_cbranch_scc1 L_a_{kind}_loop')
        for s in range(NS-R+1, NS): stage(D*(NS-1-s), False)
        nonce_issue(a, vN, vZ)
        a('s_waitcnt lgkmcnt(0)')
        mm(FB)
    a(f's_cmp_ge_u32 s{sW}, 4')
    a('s_cbranch_scc1 L_a_vloop')
    qkv_path('qk')
    a('s_branch L_a_stats')
    a.label('L_a_vloop')
    qkv_path('v')
    a.label('L_a_stats')
    stamp(a, 2)
    vSX, vSQ = 4, 5
    a(f'''v_and_b32 v{t0}, 3, v0
          v_cmp_eq_u32 vcc, 1, v{t0}
          v_cndmask_b32 v{vSQ}, v{ASQ}, v{ASQ+1}, vcc
          v_cmp_eq_u32 vcc, 2, v{t0}
          v_cndmask_b32 v{vSQ}, v{vSQ}, v{ASQ+2}, vcc
          v_cmp_eq_u32 vcc, 3, v{t0}
          v_cndmask_b32 v{vSQ}, v{vSQ}, v{ASQ+3}, vcc
          v_mul_f32 v{vSX}, {f32bits(1/512):#x}, v{ASX}
          v_mul_f32 v{t0}, v{vSX}, v{vSX}
          v_mul_f32 v{vSQ}, {f32bits(1/512):#x}, v{vSQ}
          v_sub_f32 v{vSQ}, v{vSQ}, v{t0}
          v_max_f32 v{vSQ}, 0, v{vSQ}
          v_cvt_pk_bf16_f32 v{t0}, v{vSX}, v{vSQ}
          v_lshlrev_b32 v{vSX}, 16, v{t0}
          v_and_b32 v{vSQ}, 0xffff0000, v{t0}
          v_add_f32 v{vSQ}, {f32bits(1e-5):#x}, v{vSQ}
          v_cvt_pk_bf16_f32 v{t0}, v{vSQ}, v{vSQ}
          v_lshlrev_b32 v{t0}, 16, v{t0}
          v_sqrt_f32 v{t0}, v{t0}
          v_cvt_pk_bf16_f32 v{t0}, v{t0}, v{t0}
          v_lshlrev_b32 v{t0}, 16, v{t0}
          v_rcp_f32 v{vSQ}, v{t0}
          v_and_b32 v{t0}, 15, v0
          v_lshlrev_b32 v{t0}, 2, v{t0}
          s_lshl_b32 s{sT0}, s{sW}, 6
          s_add_u32 s{sT0}, s{sT0}, {STAT}
          v_add_u32 v{t1}, s{sT0}, v{t0}
          s_mov_b32 s{sEX}, 0x00f0000f
          s_mov_b32 s{sEX+1}, 0xf0000f00
          s_mov_b64 exec, s[{sEX}:{sEX+1}]
          ds_write_b32 v{t1}, v{vSX}
          ds_write_b32 v{t1}, v{vSQ} offset:512''')
    a(f'''s_and_b32 s{sT0}, s{sMB}, 1
          s_cmp_ge_u32 s{sW}, 4
          s_cselect_b32 s{sT0}, 2, s{sT0}
          s_lshl_b32 s{sT0}, s{sT0}, 7
          s_lshr_b32 s{sT1}, s{sMB}, 1
          s_mul_i32 s{sT1}, s{sT1}, 384
          s_add_u32 s{sT0}, s{sT0}, s{sT1}
          s_add_u32 s{sT0}, s{sT0}, {STAT+1024}
          s_mov_b64 exec, 0xffff
          v_add_u32 v{t1}, s{sT0}, v{t0}
          ds_write_b32 v{t1}, v{ACS}
          ds_write_b32 v{t1}, v{ACS+1} offset:64
          s_mov_b64 exec, -1''')
    vL16, vKA, vVA, vMK, vVB, vKB = 2, 3, 6, 7, 8, 9
    Q, KF = 12, 16
    VF = (20, 28)
    PK = 36
    S = (48, 64)
    O = 80
    C = 96
    t0, t1 = 10, 11
    vN2, vZ2 = 44, 45
    a(f'v_mov_b32 v{vZ2}, 0')
    vH = 46
    a(f'v_lshrrev_b32 v{vH}, 5, v0\n v_lshlrev_b32 v{vH}, 4, v{vH}\n v_lshlrev_b32 v{vL16}, 4, v0')
    sOWN = 20
    a(f'''s_lshl_b32 s{sOWN}, s{sCT}, 7
          s_lshl_b32 s{sT1}, s{sRB}, 2
          s_add_u32 s{sOWN}, s{sOWN}, s{sT1}
          s_add_u32 s{sOWN}, s{sOWN}, s{sMB}
          s_lshl_b32 s{sOWN}, s{sOWN}, 10''')
    a('s_waitcnt vmcnt(0) lgkmcnt(0)')
    a(f'v_mov_b32 v{vN2}, v{vN}')
    a('s_barrier')
    a(f's_cmp_ge_u32 s{sW}, 4')
    a('s_cbranch_scc1 L_a_vepi')
    E0, E1 = 100, 20
    vM, vR = 4, 5
    a(f'''s_lshl_b32 s{sT1}, s{sMB}, 7
          s_add_u32 s{sT1}, s{sT1}, {STAT}
          v_and_b32 v{t0}, 31, v0
          v_lshl_add_u32 v{t0}, v{t0}, 2, s{sT1}
          ds_read_b32 v{vM}, v{t0}
          ds_read_b32 v{vR}, v{t0} offset:512
          v_add_u32 v{t1}, {STAT+1024}, v{vH}''')
    def cs_reads(j):
        for i in range(4):
            a(f'ds_read_b128 {vr(E0+4*i,4)}, v{t1} offset:{128*j+32*i}')
            a(f'ds_read_b128 {vr(E1+4*i,4)}, v{t1} offset:{384+128*j+32*i}')
    cs_reads(1)
    a(f's_bitcmp1_b32 s{sMB}, 0')
    a('s_cbranch_scc0 L_a_noswap')
    for r in range(16): a(f'v_swap_b32 v{ACC+r}, v{ACC+16+r}')
    a.label('L_a_noswap')
    a(f's_lshl_b32 s{sT0}, s{sMB}, 10')
    a(f'v_add_u32 v{t0}, s{sT0}, v{vL16}')
    PKK = 48
    for j in (1, 0):
        a('s_waitcnt lgkmcnt(0)')
        if j == 0: a(f'v_mul_f32 v{vR}, {f32bits(0.25 * math.log2(math.e)):#x}, v{vR}')
        for r in range(16):
            d = ACC + 16*j + r
            a(f'v_add_f32 v{E0+r}, v{E0+r}, v{E1+r}')
            a(f'v_fma_f32 v{d}, -v{vM}, v{E0+r}, v{d}')
            a(f'v_mul_f32 v{d}, v{vR}, v{d}')
        if j == 1: cs_reads(0)
        for hh in range(2):
            o = (PKK + 4*hh) if j == 1 else (Q if hh == 0 else PKK + 8)
            for r in range(4):
                d = ACC + 16*j + 8*hh + 2*r
                a(f'v_cvt_pk_bf16_f32 v{o+r}, v{d}, v{d+1}')
            if j == 1:
                a(f's_add_u32 s{sT1}, s{sOWN}, {WS_K + hh*65536}')
                a(f'buffer_store_dwordx4 {vr(o,4)}, v{vL16}, s[{S_WS}:{S_WS+3}], s{sT1} offen{WT}')
                a(f'ds_write_b128 v{t0}, {vr(o,4)} offset:{32768 + hh*16384}')
            elif hh == 1:
                a(f'ds_write_b128 v{t0}, {vr(o,4)}')
    a('s_branch L_a_epi_done')
    a.label('L_a_vepi')
    a(f'''s_lshl_b32 s{sT1}, s{sMB}, 7
          s_add_u32 s{sT1}, s{sT1}, {STAT}
          v_add_u32 v{t0}, s{sT1}, v{vH}
          v_and_b32 v{t1}, 31, v0
          v_lshlrev_b32 v{t1}, 2, v{t1}
          v_add_u32 v{t1}, {STAT+1024+256}, v{t1}
          ds_read_b32 v4, v{t1}
          ds_read_b32 v5, v{t1} offset:384''')
    for i in range(4):
        a(f'ds_read_b128 {vr(E0+4*i,4)}, v{t0} offset:{32*i}')
        a(f'ds_read_b128 {vr(E1+4*i,4)}, v{t0} offset:{512+32*i}')
    a(f'''v_and_b32 v{t1}, 15, v0
          v_lshlrev_b32 v{t1}, 4, v{t1}
          v_lshl_add_u32 v{t1}, v{vH}, 4, v{t1}
          v_bfe_u32 v1, v0, 4, 1
          v_lshl_add_u32 v{t0}, v1, 16, v{t1}
          v_lshl_add_u32 v{t1}, v1, 14, v{t1}
          s_lshl_b32 s{sT0}, s{sMB}, 10
          v_add_u32 v{t1}, s{sT0}, v{t1}
          s_add_u32 s{sT1}, s{sOWN}, {WS_V}''')
    a('s_waitcnt lgkmcnt(0)')
    a('v_add_f32 v4, v4, v5')
    for r in range(16):
        d = ACC + r
        a(f'v_fma_f32 v{d}, -v{E0+r}, v4, v{d}')
        a(f'v_mul_f32 v{d}, v{E1+r}, v{d}')
    for hh in range(2):
        o = PKK + 4*hh
        for r in range(4):
            d = ACC + 8*hh + 2*r
            a(f'v_cvt_pk_bf16_f32 v{o+r}, v{d}, v{d+1}')
        a(f'buffer_store_dwordx4 {vr(o,4)}, v{t0}, s[{S_WS}:{S_WS+3}], s{sT1} offen offset:{hh*512}{WT}')
        a(f'ds_write_b128 v{t1}, {vr(o,4)} offset:{32768+8192+hh*512}')
    a.label('L_a_epi_done')
    PRIO = opt.get('prio', True); LOWT = opt.get('lowtile', 4); PB = opt.get('pbase', 0)
    sC, sKT, sDSA, sRSK, sHB, sMK = 19, 21, 22, 23, 33, 26
    a(f'''v_and_b32 v{t0}, 11, v0
          v_cmp_eq_u32 vcc, 0, v{t0}
          v_mov_b32 v{t1}, 0x3f803f80
          v_cndmask_b32 v{VF[1]+4}, 0, v{t1}, vcc''')
    for r in range(5, 8): a(f'v_mov_b32 v{VF[1]+r}, v{VF[1]+4}')
    a(f'''s_lshl_b32 s{sT0}, s{sW}, 10
          s_add_u32 s{sT0}, s{sT0}, {ONES}
          v_add_u32 v{t0}, s{sT0}, v{vL16}
          ds_write_b128 v{t0}, {vr(VF[1]+4,4)}''')
    a(f'''s_lshr_b32 s{sHB}, s{sW}, 2
          s_lshl_b32 s{sHB}, s{sHB}, 14
          v_add_u32 v{vKB}, s{sHB}, v{vL16}
          v_lshlrev_b32 v{t0}, 4, v{vH}
          s_add_u32 s{sT0}, s{sHB}, 8192
          v_add_u32 v{t0}, s{sT0}, v{t0}
          v_bfe_u32 v{vMK}, v0, 4, 1
          v_cmp_eq_u32 vcc, 0, v{vMK}
          v_mov_b32 v{t1}, {ONES}
          v_cndmask_b32 v{t0}, v{t1}, v{t0}, vcc
          v_and_b32 v{t1}, 15, v0
          v_lshl_add_u32 v{vVB}, v{t1}, 4, v{t0}
          v_xor_b32 v{vMK}, 1, v{vMK}
          s_mov_b32 s{sRSK}, 32768
          v_add_u32 v{vKA}, s{sRSK}, v{vKB}
          v_mad_u32_u24 v{vVA}, v{vMK}, s{sRSK}, v{vVB}''')
    for r in range(O, O + 16): a(f'v_mov_b32 v{r}, 0')
    for r in range(PK + 4, PK + 8): a(f'v_mov_b32 v{r}, 0')
    a('s_waitcnt lgkmcnt(0)')
    a('s_barrier')
    stamp(a, 3)
    a(f's_setprio {PB+1}')
    a(f'ds_read_b128 {vr(KF,4)}, v{vKA}')
    a(f's_cmp_lt_u32 s{sW}, 4')
    a('s_cbranch_scc1 L_a_haveq')
    a(f's_lshl_b32 s{sT0}, s{sMB}, 10')
    a(f'v_add_u32 v{t0}, s{sT0}, v{vL16}')
    a(f'ds_read_b128 {vr(Q,4)}, v{t0}')
    a.label('L_a_haveq')
    a('s_waitcnt lgkmcnt(0)')
    a(f'ds_read_b128 {vr(VF[0],4)}, v{vVA}')
    a(f'ds_read_b128 {vr(VF[0]+4,4)}, v{vVA} offset:512')
    a(f'{MFMA} {vr(S[1],16)}, {vr(KF,4)}, {vr(Q,4)}, 0')
    def setC(m):
        a(f'v_mov_b32 v{t1}, v{m}')
        a(f'v_permlane32_swap_b32 v{t1}, v{m}')
        a(f'v_max_f32 v{m}, v{m}, v{t1}')
        for r in range(16): a(f'v_sub_f32 v{C+r}, 0, v{m}')
    a(f'v_max3_f32 v{t0}, v{S[1]}, v{S[1]+1}, v{S[1]+2}')
    for r in range(3, 15, 2): a(f'v_max3_f32 v{t0}, v{t0}, v{S[1]+r}, v{S[1]+r+1}')
    a(f'v_max_f32 v{t0}, v{t0}, v{S[1]+15}')
    setC(t0)
    a(f'{MFMA} {vr(S[0],16)}, {vr(KF,4)}, {vr(Q,4)}, {vr(C,16)}')
    a(f'ds_read_b128 {vr(KF,4)}, v{vKA} offset:1024')

    def tile(j, koff, voff, qk=True, h1=None, h2=None, h3=None, h4=None):
        cur, nxt = S[j % 2], S[(j + 1) % 2]
        vc, vn = VF[j % 2], VF[(j + 1) % 2]
        e = lambda r: a(f'v_exp_f32 v{cur+r}, v{cur+r}')
        c = lambda r: a(f'v_cvt_pk_bf16_f32 v{PK+r}, v{cur+2*r}, v{cur+2*r+1}')
        e(0); e(1)
        a(f'{MFMA} {vr(O,16)}, {vr(vn+4,4)}, {vr(PK+4,4)}, {vr(O,16)}')
        a('s_waitcnt lgkmcnt(0)')
        if h1: h1()
        e(2); c(0); e(3); e(4); c(1); e(5)
        if h2: h2()
        e(6)
        if qk: a(f'{MFMA} {vr(nxt,16)}, {vr(KF,4)}, {vr(Q,4)}, {vr(C,16)}')
        if h3: h3()
        if koff is not None: a(f'ds_read_b128 {vr(KF,4)}, v{vKA} offset:{koff}')
        if voff is not None:
            a(f'ds_read_b128 {vr(vn,4)}, v{vVA} offset:{voff}')
            a(f'ds_read_b128 {vr(vn+4,4)}, v{vVA} offset:{voff+512}')
        e(7); c(2); e(8); c(3); e(9); e(10); e(11)
        a(f'{MFMA} {vr(O,16)}, {vr(vc,4)}, {vr(PK,4)}, {vr(O,16)}')
        if h4: h4()
        c(4); e(12); c(5); e(13); e(14); e(15); c(6); c(7)

    def publish():
        a('s_waitcnt vmcnt(0)')
        a('s_barrier')
        a(f's_cmp_lg_u32 s{sW}, 0')
        a('s_cbranch_scc1 L_a_nopub')
        nonce_finish(a, vN2, vZ2)
        a(f's_lshl_b32 s{sT0}, s{sCT}, 7\n s_lshl_b32 s{sT1}, s{sRB}, 2\n s_add_u32 s{sT0}, s{sT0}, s{sT1}\n s_add_u32 s{sT0}, s{sT0}, {FL_QKV}')
        flag_set(a, sT0, t0, t1)
        a.label('L_a_nopub')
    PUBT = opt.get('pubtile', 1)
    for j in range(4):
        tile(j, (j+2)*1024 if j < 2 else None, (j+1)*1024 if j < 3 else None, qk=(j < 3), h4=(publish if j == PUBT else None))
    stamp(a, 4)
    a(f's_cmp_lg_u32 s{sW}, 0')
    a('s_cbranch_scc1 L_a_nowait')
    a(f's_lshl_b32 s{sT0}, s{sCT}, 7\n s_add_u32 s{sT0}, s{sT0}, {FL_QKV}')
    flag_wait(a, sT0, 16, t0, t1)
    a.label('L_a_nowait')
    sGB = 20
    a(f'''s_lshl_b32 s{sGB}, s{sCT}, 1
          s_lshr_b32 s{sT0}, s{sW}, 2
          s_add_u32 s{sGB}, s{sGB}, s{sT0}
          s_lshl_b32 s{sGB}, s{sGB}, 16
          s_lshl_b32 s{sKT}, s{sRB}, 12''')
    a('s_barrier')
    stamp(a, 5)
    def gaddr(dst, delta_s, delta_c, base):
        a(f's_add_u32 s{dst}, s{sKT}, {delta_c}')
        if delta_s is not None: a(f's_add_u32 s{dst}, s{dst}, s{delta_s}')
        a(f's_and_b32 s{dst}, s{dst}, 0xffff')
        a(f's_add_u32 s{dst}, s{dst}, s{sGB}')
        if base: a(f's_add_u32 s{dst}, s{dst}, {base}')
    sM1, sM2 = 34, 32
    a(f's_lshl_b32 s{sM1}, s{sMB}, 10\n s_lshl_b32 s{sM2}, s{sMB}, 11')
    gaddr(sT0, None, 4096, WS_K)
    a(f'buffer_load_dwordx4 {vr(KF,4)}, v{vL16}, s[{S_WS}:{S_WS+3}], s{sT0} offen')
    a(f's_add_u32 s{sDSA}, s{sHB}, s{sM1}')
    gaddr(sT0, sM1, 5120, WS_K)
    a(f's_add_u32 m0, s{sDSA}, 4096')
    a(f'buffer_load_dwordx4 v{vL16}, s[{S_WS}:{S_WS+3}], s{sT0} offen lds')
    gaddr(sT0, sM1, 4096, WS_V)
    a(f's_add_u32 m0, s{sDSA}, {8192+4096}')
    a(f'buffer_load_dwordx4 v{vL16}, s[{S_WS}:{S_WS+3}], s{sT0} offen lds')
    a(f's_add_u32 s{sDSA}, s{sHB}, s{sM2}')
    a(f's_add_u32 s{sKT}, s{sKT}, s{sM2}')
    def dma_iter():
        a(f's_xor_b32 s{sDSA}, s{sDSA}, 32768')
        a(f's_add_u32 s{sKT}, s{sKT}, 8192')
        for i in range(2):
            gaddr(sT0, None, 1024 + i*1024, WS_K)
            a(f's_add_u32 m0, s{sDSA}, {i*1024}')
            a(f'buffer_load_dwordx4 v{vL16}, s[{S_WS}:{S_WS+3}], s{sT0} offen lds')
        for i in range(2):
            gaddr(sT0, None, i*1024, WS_V)
            a(f's_add_u32 m0, s{sDSA}, {8192 + i*1024}')
            a(f'buffer_load_dwordx4 v{vL16}, s[{S_WS}:{S_WS+3}], s{sT0} offen lds')
    dma_iter()
    a(f'''s_mov_b32 s{sRSK}, 0
          v_mov_b32 v{vKA}, v{vKB}
          v_mov_b32 v{vVA}, v{vVB}
          s_mov_b32 s{sC}, 0''')
    a('s_waitcnt vmcnt(6)')
    a(f'{MFMA} {vr(S[0],16)}, {vr(KF,4)}, {vr(Q,4)}, {vr(C,16)}')
    a('s_waitcnt vmcnt(4)')
    a('s_barrier')
    stamp(a, 6)
    a(f'ds_read_b128 {vr(KF,4)}, v{vKA} offset:4096')
    a(f'ds_read_b128 {vr(VF[0],4)}, v{vVA} offset:4096')
    a(f'ds_read_b128 {vr(VF[0]+4,4)}, v{vVA} offset:{4096+512}')
    a('s_nop 5')
    a('s_branch L_att_mid')
    a.label('L_att_loop')
    for j in range(8):
        if j == 4: a.label('L_att_mid')
        h1 = h2 = h3 = h4 = None
        if j == 7:
            h1 = lambda: a(f's_xor_b32 s{sRSK}, s{sRSK}, 32768')
            def h2():
                a(f'v_add_u32 v{vKA}, s{sRSK}, v{vKB}')
                a(f'v_mad_u32_u24 v{vVA}, v{vMK}, s{sRSK}, v{vVB}')
            def h3():
                a('s_waitcnt vmcnt(0)')
                a('s_barrier')
                if PRIO: a(f's_setprio {PB+1}')
            def h4():
                a(f's_add_u32 s{sC}, s{sC}, 1')
                a(f's_cmp_lt_u32 s{sC}, 8')
        if j == 0:
            def h4():
                a(f's_cmp_lt_u32 s{sC}, 7')
                a('s_cbranch_scc0 L_att_nodma')
                dma_iter()
                a.label('L_att_nodma')
        if j == LOWT and PRIO:
            h4 = lambda: a(f's_setprio {PB}')
        tile(j, ((j+1)%8)*1024, ((j+1)%8)*1024, h1=h1, h2=h2, h3=h3, h4=h4)
    a('s_cbranch_scc1 L_att_loop')
    a(f'{MFMA} {vr(O,16)}, {vr(VF[1]+4,4)}, {vr(PK+4,4)}, {vr(O,16)}')
    a('s_waitcnt lgkmcnt(0)')
    a('s_setprio 3')
    stamp(a, 7)
    a(f'v_mov_b32 v{t0}, {f32bits(2.0**100):#x}')
    a(f'v_cmp_nlt_f32 vcc, v{O+8}, v{t0}')
    a('s_nop 4')
    a('s_cbranch_vccnz L_att_fb')
    a.label('L_att_fin')
    a(f'v_rcp_f32 v{t0}, v{O+8}')
    a(f'''s_lshl_b32 s{sT0}, s{sRB}, 2
          s_add_u32 s{sT0}, s{sT0}, s{sMB}
          s_mul_i32 s{sT0}, s{sT0}, {144*1024}
          s_lshr_b32 s{sT1}, s{sGB}, 6
          s_add_u32 s{sT0}, s{sT0}, s{sT1}
          s_add_u32 s{sT0}, s{sT0}, {WS_Z}''')
    for r in range(8): a(f'v_mul_f32 v{O+r}, v{t0}, v{O+r}')
    for r in range(4): a(f'v_cvt_pk_bf16_f32 v{PK+r}, v{O+2*r}, v{O+2*r+1}')
    a(f'buffer_store_dwordx4 {vr(PK,4)}, v{vL16}, s[{S_WS}:{S_WS+3}], s{sT0} offen{WT}')
    a('s_waitcnt vmcnt(0)')
    a('s_barrier')
    a(f's_cmp_lg_u32 s{sW}, 0')
    a('s_cbranch_scc1 L_a_end')
    a(f's_lshl_b32 s{sT0}, s{sRB}, 7\n s_lshl_b32 s{sT1}, s{sCT}, 2\n s_add_u32 s{sT0}, s{sT0}, s{sT1}\n s_add_u32 s{sT0}, s{sT0}, {FL_O}')
    flag_set(a, sT0, t0, t1)
    a.label('L_a_end')
    stamp_end(a)
    a('s_endpgm')
    a.label('L_att_fb')
    a(f'''s_add_u32 s{sKT}, s{sGB}, {WS_K}
          s_mov_b32 s{sC}, 0
          s_mov_b32 s{sMK}, 0x0000ffff
          s_mov_b32 s{sMK+1}, 0x0000ffff
          v_mov_b32 v{t0}, 0xff800000''')
    a.label('L_att_fb1')
    a(f'buffer_load_dwordx4 {vr(KF,4)}, v{vL16}, s[{S_WS}:{S_WS+3}], s{sKT} offen')
    a('s_waitcnt vmcnt(0)')
    a(f'{MFMA} {vr(S[0],16)}, {vr(KF,4)}, {vr(Q,4)}, 0')
    for r in range(0, 16, 2): a(f'v_max3_f32 v{t0}, v{t0}, v{S[0]+r}, v{S[0]+r+1}')
    a(f'''s_add_u32 s{sKT}, s{sKT}, 1024
          s_add_u32 s{sC}, s{sC}, 1
          s_cmp_lt_u32 s{sC}, 64
          s_cbranch_scc1 L_att_fb1''')
    setC(t0)
    for r in range(O, O + 16): a(f'v_mov_b32 v{r}, 0')
    a(f'''s_sub_u32 s{sKT}, s{sKT}, 65536
          s_mov_b32 s{sC}, 0
          v_and_b32 v{vVA}, 0x1ff, v{vVB}''')
    a.label('L_att_fb2')
    a(f's_add_u32 s{sT0}, s{sKT}, {WS_V-WS_K}')
    a(f'buffer_load_dwordx4 {vr(KF,4)}, v{vL16}, s[{S_WS}:{S_WS+3}], s{sKT} offen')
    a(f's_mov_b64 exec, s[{sMK}:{sMK+1}]')
    a(f'buffer_load_dwordx4 {vr(VF[0],4)}, v{vVA}, s[{S_WS}:{S_WS+3}], s{sT0} offen')
    a(f'buffer_load_dwordx4 {vr(VF[0]+4,4)}, v{vVA}, s[{S_WS}:{S_WS+3}], s{sT0} offen offset:512')
    a('s_mov_b64 exec, -1')
    a('s_waitcnt vmcnt(0)')
    a(f'{MFMA} {vr(S[0],16)}, {vr(KF,4)}, {vr(Q,4)}, {vr(C,16)}')
    for r in range(16): a(f'v_exp_f32 v{S[0]+r}, v{S[0]+r}')
    for r in range(8): a(f'v_cvt_pk_bf16_f32 v{PK+r}, v{S[0]+2*r}, v{S[0]+2*r+1}')
    a(f'{MFMA} {vr(O,16)}, {vr(VF[0],4)}, {vr(PK,4)}, {vr(O,16)}')
    a(f'{MFMA} {vr(O,16)}, {vr(VF[0]+4,4)}, {vr(PK+4,4)}, {vr(O,16)}')
    a(f'''s_add_u32 s{sKT}, s{sKT}, 1024
          s_add_u32 s{sC}, s{sC}, 1
          s_cmp_lt_u32 s{sC}, 64
          s_nop 7
          s_cbranch_scc1 L_att_fb2''')
    a('s_nop 7')
    a('s_branch L_att_fin')

def role_f(a, opt):
    t0, t1 = 14, 15
    vN, vZ, vL16 = 16, 17, 18
    sJ, sI = 54, 55
    a(f's_setprio 3')
    a(f'v_lshlrev_b32 v{vL16}, 4, v0\n v_mov_b32 v{vZ}, 0')
    sROW = 20
    a(f'''s_lshl_b32 s{sROW}, s{sRB}, 4
          s_add_u32 s{sROW}, s{sROW}, s{sCT}
          s_lshl_b32 s{sROW}, s{sROW}, 3
          s_add_u32 s{sROW}, s{sROW}, s{sW}
          s_lshl_b32 s{sROW}, s{sROW}, 10''')
    a('s_waitcnt lgkmcnt(0)')
    srd(a, S_X, 2048*1024); srd(a, S_WS, WS_SIZE); srd(a, S_DBG, 256)
    a(f'buffer_load_dwordx4 v[20:23], v{vL16}, s[{S_X}:{S_X+3}], s{sROW} offen')
    srd(a, S_W, 512*3584); srd(a, S_U, 512*3584); srd(a, S_WO, 512*1024); srd(a, S_WD, 1792*1024); srd(a, S_OUT, 2048*1024)
    SLOT, R, NS, D = 24576, 3, 16, 3
    sXO, sWOF, sDS, sRS, sDX, sGCT = 21, 22, 23, 26, 27, 32
    vDX, vDW = 2, 3
    vBX0, vBX1, vBW = 4, 5, 6
    vX0, vX1, vW = 9, 10, 11
    FA, FB = 24, 40
    ACC = 64
    a(f's_mul_i32 s{sGCT}, s{sJ}, 7\n s_add_u32 s{sGCT}, s{sGCT}, s{sI}')
    x_dma_voff(a, vDX, t0)
    a(f'''v_bfe_u32 v1, v0, 2, 2
          s_lshl_b32 s{sT0}, s{sW}, 2
          v_add_u32 v1, s{sT0}, v1
          v_mul_u32_u24 v{t0}, 3584, v1
          v_lshrrev_b32 v1, 4, v0
          v_lshl_add_u32 v{t0}, v1, 6, v{t0}
          v_and_b32 v1, 3, v0
          v_lshl_add_u32 v{t0}, v1, 4, v{t0}
          s_lshl_b32 s{sT0}, s{sGCT}, 8
          v_add_u32 v{vDW}, s{sT0}, v{t0}
          s_lshl_b32 s{sDX}, s{sW}, 10
          s_lshl_b32 s{sXO}, s{sRB}, 17
          s_add_u32 s{sXO}, s{sXO}, {WS_XN}
          s_and_b32 s{sT1}, s{sW}, 1
          s_lshl_b32 s{sT1}, s{sT1}, 12''')
    x_read_base(a, vBX0, vBX1, t0, sT1)
    w_lane_part(a, t0, 1024)
    a(f'''s_lshr_b32 s{sT0}, s{sW}, 1
          s_lshl_b32 s{sT0}, s{sT0}, 8
          s_add_u32 s{sT0}, s{sT0}, 8192
          v_add_u32 v{vBW}, s{sT0}, v1''')
    X = 24
    a('s_waitcnt vmcnt(0)')
    stamp(a, 1)
    nonce_issue(a, vN, vZ)
    for r in range(4):
        a(f'v_lshlrev_b32 v{X+2*r}, 16, v{20+r}')
        a(f'v_and_b32 v{X+2*r+1}, 0xffff0000, v{20+r}')
    def wave_sum(r):
        for m in ('quad_perm:[1,0,3,2]', 'quad_perm:[2,3,0,1]', 'row_half_mirror', 'row_mirror'):
            a(f'v_add_f32_dpp v{r}, v{r}, v{r} {m} row_mask:0xf bank_mask:0xf')
        for op in ('v_permlane16_swap_b32', 'v_permlane32_swap_b32'):
            a(f'v_mov_b32 v{t1}, v{r}')
            a(f'{op} v{t1}, v{r}')
            a(f'v_add_f32 v{r}, v{r}, v{t1}')
    vS, vQ = 12, 13
    a(f'v_add_f32 v{vS}, v{X}, v{X+1}')
    for r in range(2, 8): a(f'v_add_f32 v{vS}, v{vS}, v{X+r}')
    wave_sum(vS)
    a(f'v_mul_f32 v{vS}, {f32bits(1/512):#x}, v{vS}')
    a(f'v_mov_b32 v{vQ}, 0')
    for r in range(8):
        a(f'v_sub_f32 v{t0}, v{X+r}, v{vS}')
        a(f'v_fmac_f32 v{vQ}, v{t0}, v{t0}')
    wave_sum(vQ)
    a(f'''v_mul_f32 v{vQ}, {f32bits(1/512):#x}, v{vQ}
          v_cvt_pk_bf16_f32 v{t0}, v{vS}, v{vQ}
          v_lshlrev_b32 v{vS}, 16, v{t0}
          v_and_b32 v{vQ}, 0xffff0000, v{t0}
          v_add_f32 v{vQ}, {f32bits(1e-5):#x}, v{vQ}
          v_cvt_pk_bf16_f32 v{t0}, v{vQ}, v{vQ}
          v_lshlrev_b32 v{t0}, 16, v{t0}
          v_sqrt_f32 v{t0}, v{t0}
          v_cvt_pk_bf16_f32 v{t0}, v{t0}, v{t0}
          v_lshlrev_b32 v{t0}, 16, v{t0}
          v_rcp_f32 v{vQ}, v{t0}''')
    for r in range(8): a(f'v_sub_f32 v{X+r}, v{X+r}, v{vS}')
    for r in range(4):
        a(f'v_cvt_pk_bf16_f32 v{20+r}, v{X+2*r}, v{X+2*r+1}')
        a(f'v_lshlrev_b32 v{X+2*r}, 16, v{20+r}')
        a(f'v_and_b32 v{X+2*r+1}, 0xffff0000, v{20+r}')
        a(f'v_mul_f32 v{X+2*r}, v{vQ}, v{X+2*r}')
        a(f'v_mul_f32 v{X+2*r+1}, v{vQ}, v{X+2*r+1}')
        a(f'v_cvt_pk_bf16_f32 v{20+r}, v{X+2*r}, v{X+2*r+1}')
    a(f's_add_u32 s{sROW}, s{sROW}, {WS_XN}')
    a(f'buffer_store_dwordx4 v[20:23], v{vL16}, s[{S_WS}:{S_WS+3}], s{sROW} offen{WT}')
    for r in list(range(FB, FB+16)) + list(range(ACC, ACC+64)): a(f'v_mov_b32 v{r}, 0')
    a('s_waitcnt vmcnt(0)')
    a('s_barrier')
    stamp(a, 2)
    a(f's_cmp_lg_u32 s{sW}, 0')
    a('s_cbranch_scc1 L_f_nopub')
    nonce_finish(a, vN, vZ)
    a(f's_lshl_b32 s{sT0}, s{sRB}, 7\n s_lshl_b32 s{sT1}, s{sCT}, 2\n s_add_u32 s{sT0}, s{sT0}, s{sT1}\n s_add_u32 s{sT0}, s{sT0}, {FL_LN}')
    flag_set(a, sT0, t0, t1)
    a.label('L_f_nopub')
    a(f's_setprio {opt.get("prio_f", 2)}')
    a(f's_cmp_ge_u32 s{sI}, 7')
    a('s_cbranch_scc1 L_f_nogu')
    def dma_w(slot_s, slot_c):
        if slot_s is not None: a(f's_add_u32 m0, s{slot_s}, 8192')
        else: a(f's_add_u32 m0, s{sDX}, {slot_c + 8192}')
        a(f'buffer_load_dwordx4 v{vDW}, s[{S_W}:{S_W+3}], s{sWOF} offen lds')
        a(f's_add_u32 m0, m0, 8192')
        a(f'buffer_load_dwordx4 v{vDW}, s[{S_U}:{S_U+3}], s{sWOF} offen lds')
        a(f's_add_u32 s{sWOF}, s{sWOF}, {32*3584}')
    def dma_x(slot_s, slot_c):
        if slot_s is not None: a(f's_mov_b32 m0, s{slot_s}')
        else: a(f's_add_u32 m0, s{sDX}, {slot_c}')
        a(f'buffer_load_dwordx4 v{vDX}, s[{S_WS}:{S_WS+3}], s{sXO} offen lds')
        a(f's_add_u32 s{sXO}, s{sXO}, 64')
    a(f's_mov_b32 s{sWOF}, 0')
    dma_w(None, 0); dma_w(None, SLOT)
    a(f's_cmp_lg_u32 s{sW}, 0')
    a('s_cbranch_scc1 L_f_now1')
    a(f's_lshl_b32 s{sT0}, s{sRB}, 7\n s_add_u32 s{sT0}, s{sT0}, {FL_LN}')
    flag_wait(a, sT0, 16, t0, t1)
    a.label('L_f_now1')
    a('s_barrier')
    stamp(a, 3)
    dma_x(None, 0); dma_x(None, SLOT)
    a(f's_add_u32 s{sDS}, s{sDX}, {2*SLOT}')
    a(f's_add_u32 s{sT1}, s{sDX}, {3*SLOT}')
    a(f's_mov_b32 s{sRS}, 0')
    def reads(F, ks):
        vx = (vX0, vX1)[ks]
        for i in range(2): a(f'ds_read_b128 {vr(F+4*i,4)}, v{vx} offset:{i*2048}')
        for j in range(2):
            for t in range(2):
                a(f'ds_read_b64_tr_b16 {vr(F+8+4*j+2*t,2)}, v{vW} offset:{(4*ks+t)*1024 + j*8192}')
    def mm(F):
        for i in range(2):
            for j in range(2):
                d = ACC + 16*(2*i+j)
                a(f'{MFMA} {vr(d,16)}, {vr(F+8+4*j,4)}, {vr(F+4*i,4)}, {vr(d,16)}')
    def stage(vm, with_dma):
        a(f'v_add_u32 v{vX0}, s{sRS}, v{vBX0}')
        a(f'v_add_u32 v{vW}, s{sRS}, v{vBW}')
        a(f'v_add_u32 v{vX1}, s{sRS}, v{vBX1}')
        a(f's_waitcnt vmcnt({vm}) lgkmcnt(0)')
        a('s_barrier')
        reads(FA, 0)
        mm(FB)
        reads(FB, 1)
        if with_dma:
            dma_x(sDS, 0); dma_w(sDS, 0)
            a(f's_add_u32 s{sDS}, s{sDS}, {SLOT}')
            a(f's_cmp_eq_u32 s{sDS}, s{sT1}')
            a(f's_cselect_b32 s{sDS}, s{sDX}, s{sDS}')
        a(f's_add_u32 s{sRS}, s{sRS}, {SLOT}')
        a(f's_cmp_eq_u32 s{sRS}, {SLOT*R}')
        a(f's_cselect_b32 s{sRS}, 0, s{sRS}')
        a(f's_waitcnt lgkmcnt(6)')
        mm(FA)
    a('s_waitcnt vmcnt(1)')
    a(f's_mov_b32 s{sCNT}, {NS-R+1}')
    a.label('L_f_gu_loop')
    stage(D*(R-2), True)
    a(f's_sub_u32 s{sCNT}, s{sCNT}, 1')
    a(f's_cmp_lg_u32 s{sCNT}, 0')
    a('s_cbranch_scc1 L_f_gu_loop')
    for s in range(NS-R+1, NS): stage(D*(NS-1-s), False)
    a('s_waitcnt lgkmcnt(0)')
    mm(FB)
    stamp(a, 4)
    a(f'''s_and_b32 s{sT0}, s{sW}, 1
          s_lshl_b32 s{sT0}, s{sT0}, 1
          s_lshl_b32 s{sT1}, s{sRB}, 2
          s_add_u32 s{sT0}, s{sT0}, s{sT1}
          s_mul_i32 s{sT0}, s{sT0}, 144
          s_lshl_b32 s{sT1}, s{sGCT}, 3
          s_add_u32 s{sT0}, s{sT0}, s{sT1}
          s_and_b32 s{sT1}, s{sW}, 6
          s_add_u32 s{sT0}, s{sT0}, s{sT1}
          s_lshl_b32 s{sT0}, s{sT0}, 10
          s_add_u32 s{sT0}, s{sT0}, {WS_Z + 32*1024}''')
    for i in range(2):
        dG, dU = ACC + 32*i, ACC + 32*i + 16
        for r in range(16):
            a(f'v_max_f32 v{dG+r}, 0, v{dG+r}')
            a(f'v_mul_f32 v{dG+r}, v{dU+r}, v{dG+r}')
        for hh in range(2):
            o = dU + 4*hh
            for r in range(4):
                d = dG + 8*hh + 2*r
                a(f'v_cvt_pk_bf16_f32 v{o+r}, v{d}, v{d+1}')
            a(f'buffer_store_dwordx4 {vr(o,4)}, v{vL16}, s[{S_WS}:{S_WS+3}], s{sT0} offen offset:{hh*1024}{WT}')
        if i == 0: a(f's_add_u32 s{sT0}, s{sT0}, {144*1024}')
    a('s_waitcnt vmcnt(0)')
    a('s_barrier')
    a(f's_cmp_lg_u32 s{sW}, 0')
    a('s_cbranch_scc1 L_f_nogu')
    a(f's_lshl_b32 s{sT0}, s{sRB}, 7\n s_lshl_b32 s{sT1}, s{sGCT}, 2\n s_add_u32 s{sT0}, s{sT0}, s{sT1}\n s_add_u32 s{sT0}, s{sT0}, {FL_H}')
    flag_set(a, sT0, t0, t1)
    a.label('L_f_nogu')
    stamp(a, 5)
    sZ0, sZ1, sWOFF, sLB, sNT = 19, 20, 21, 22, 23
    vDW, vRA, vRB, vXO = 3, 4, 5, 8
    XR, WF, ZF, REG = 20, 56, 24, 10240
    a(f'''s_lshr_b32 s{sNT}, s{sCT}, 1
          v_lshrrev_b32 v{t0}, 5, v0
          v_lshlrev_b32 v{t0}, 2, v{t0}
          v_bfe_u32 v{t1}, v0, 2, 2
          v_add_u32 v{t0}, v{t0}, v{t1}
          v_lshlrev_b32 v{t0}, 10, v{t0}
          v_bfe_u32 v{t1}, v0, 4, 1
          v_lshl_add_u32 v{t0}, v{t1}, 6, v{t0}
          v_and_b32 v{t1}, 3, v0
          v_lshl_add_u32 v{t0}, v{t1}, 4, v{t0}
          s_lshl_b32 s{sT0}, s{sNT}, 7
          v_add_u32 v{vDW}, s{sT0}, v{t0}
          s_lshl_b32 s{sWOFF}, s{sW}, 14
          s_mul_i32 s{sLB}, s{sW}, {REG}''')
    NI = 18
    def issue_w(i):
        sl = i % 4
        Sd = S_WD if i < 14 else S_WO
        woff = (i if i < 14 else i - 14) * 8 * 16384
        a(f's_add_u32 m0, s{sLB}, {sl*2048}')
        a(f's_add_u32 s{sT0}, s{sWOFF}, {woff}')
        a(f'buffer_load_dwordx4 v{vDW}, s[{Sd}:{Sd+3}], s{sT0} offen lds')
        a(f's_add_u32 m0, s{sLB}, {sl*2048+1024}')
        a(f's_add_u32 s{sT0}, s{sWOFF}, {woff+8192}')
        a(f'buffer_load_dwordx4 v{vDW}, s[{Sd}:{Sd+3}], s{sT0} offen lds')
    def issue_z(i):
        sl = i % 4
        zoff = (32 + 8*i if i < 14 else 8*(i-14)) * 1024
        a(f's_add_u32 s{sT0}, s{sZ0}, {zoff}')
        a(f'buffer_load_dwordx4 {vr(ZF+8*sl,4)}, v{vL16}, s[{S_WS}:{S_WS+3}], s{sT0} offen')
        a(f's_add_u32 s{sT0}, s{sZ1}, {zoff}')
        a(f'buffer_load_dwordx4 {vr(ZF+8*sl+4,4)}, v{vL16}, s[{S_WS}:{S_WS+3}], s{sT0} offen')
    for i in range(3): issue_w(i)
    a(f'''s_bfe_u32 s{sT0}, s{sW}, 0x10001
          s_lshl_b32 s{sT1}, s{sRB}, 2
          s_add_u32 s{sT0}, s{sT0}, s{sT1}
          s_and_b32 s{sT1}, s{sCT}, 1
          s_lshl_b32 s{sT1}, s{sT1}, 1
          s_add_u32 s{sT0}, s{sT0}, s{sT1}
          s_xor_b32 s{sT1}, s{sT0}, 1
          s_mul_i32 s{sZ0}, s{sT0}, 144
          s_mul_i32 s{sZ1}, s{sT1}, 144
          s_add_u32 s{sZ0}, s{sZ0}, s{sW}
          s_add_u32 s{sZ1}, s{sZ1}, s{sW}
          s_lshl_b32 s{sZ0}, s{sZ0}, 10
          s_lshl_b32 s{sZ1}, s{sZ1}, 10
          s_add_u32 s{sZ0}, s{sZ0}, {WS_Z}
          s_add_u32 s{sZ1}, s{sZ1}, {WS_Z}
          v_and_b32 v{t0}, 31, v0
          s_lshl_b32 s{sT0}, s{sT0}, 5
          v_add_u32 v{t0}, s{sT0}, v{t0}
          v_lshlrev_b32 v{t0}, 10, v{t0}
          v_lshrrev_b32 v{t1}, 5, v0
          v_lshl_add_u32 v{t0}, v{t1}, 4, v{t0}
          s_lshl_b32 s{sT0}, s{sNT}, 7
          s_lshr_b32 s{sT1}, s{sW}, 2
          s_lshl_b32 s{sT1}, s{sT1}, 6
          s_add_u32 s{sT0}, s{sT0}, s{sT1}
          s_and_b32 s{sT1}, s{sW}, 1
          s_lshl_b32 s{sT1}, s{sT1}, 5
          s_add_u32 s{sT0}, s{sT0}, s{sT1}
          v_add_u32 v{vXO}, s{sT0}, v{t0}''')
    a(f'buffer_load_dwordx4 {vr(XR,4)}, v{vXO}, s[{S_X}:{S_X+3}], 0 offen')
    a(f'''v_lshrrev_b32 v{t0}, 5, v0
          v_lshlrev_b32 v{t0}, 9, v{t0}
          v_bfe_u32 v{t1}, v0, 2, 2
          v_lshl_add_u32 v{t0}, v{t1}, 6, v{t0}
          v_bfe_u32 v{t1}, v0, 4, 1
          s_and_b32 s{sT0}, s{sW}, 1
          v_xor_b32 v{t1}, s{sT0}, v{t1}
          v_lshl_add_u32 v{t0}, v{t1}, 5, v{t0}
          v_and_b32 v{t1}, 1, v0
          v_lshl_add_u32 v{t0}, v{t1}, 4, v{t0}
          v_bfe_u32 v{t1}, v0, 1, 1
          v_lshl_add_u32 v{t0}, v{t1}, 3, v{t0}
          s_lshr_b32 s{sT0}, s{sW}, 2
          s_lshl_b32 s{sT0}, s{sT0}, 8
          v_add_u32 v{t0}, s{sT0}, v{t0}
          v_xor_b32 v{t1}, 256, v{t0}
          v_add_u32 v{vRA}, s{sLB}, v{t0}
          v_add_u32 v{vRB}, s{sLB}, v{t1}''')
    a(f's_cmp_lg_u32 s{sW}, 0')
    a('s_cbranch_scc1 L_f_now2')
    a(f's_lshl_b32 s{sT0}, s{sRB}, 7\n s_add_u32 s{sT0}, s{sT0}, {FL_H}')
    flag_wait(a, sT0, 14, t0, t1, sleep=4)
    a.label('L_f_now2')
    a('s_barrier')
    stamp(a, 6)
    for i in range(3): issue_z(i)
    def kb(i, vm):
        sl = i % 4
        a(f's_waitcnt vmcnt({vm})')
        for j in range(2):
            for t in range(2):
                a(f'ds_read_b64_tr_b16 {vr(WF+4*j+2*t,2)}, v{(vRA,vRB)[j]} offset:{sl*2048+t*1024}')
    def kbm(i):
        sl = i % 4
        for j in range(2):
            a(f's_waitcnt lgkmcnt({2-2*j})')
            for mi in range(2):
                d = ACC + 16*(2*j + mi)
                c = '0' if i == 0 else vr(d,16)
                a(f'{MFMA} {vr(d,16)}, {vr(WF+4*j,4)}, {vr(ZF+8*sl+4*mi,4)}, {c}')
    q = ['z0', 'z0', 'z1', 'z1', 'z2', 'z2']
    def need(tags):
        last = max((k for k, t in enumerate(q) if t in tags), default=-1)
        n = len(q) - 1 - last
        del q[:last+1]
        return n
    for i in range(14):
        kb(i, need({f'z{i}', f'w{i}'}))
        if i + 3 < 14:
            issue_w(i+3); issue_z(i+3); q += [f'w{i+3}']*2 + [f'z{i+3}']*2
        else:
            issue_w(i+3); q += [f'w{i+3}']*2
        kbm(i)
    issue_w(17); q += ['w17']*2
    stamp(a, 7)
    a(f's_cmp_lg_u32 s{sW}, 0')
    a('s_cbranch_scc1 L_f_now3')
    a(f's_lshl_b32 s{sT0}, s{sRB}, 7\n s_add_u32 s{sT0}, s{sT0}, {FL_O}')
    flag_wait(a, sT0, 16, t0, t1, sleep=2)
    a.label('L_f_now3')
    a('s_barrier')
    a('s_setprio 3')
    stamp(a, 8)
    for i in range(14, 18):
        issue_z(i); q += [f'z{i}']*2
    for i in range(14, 18):
        kb(i, need({f'z{i}', f'w{i}'}))
        kbm(i)
    stamp(a, 9)
    a(f'v_add_u32 v{vRA}, s{sLB}, v{vL16}')
    a(f's_xor_b32 s{sT0}, s{sW}, 4\n s_mul_i32 s{sT0}, s{sT0}, {REG}\n v_add_u32 v{vRB}, s{sT0}, v{vL16}')
    for k in range(8): a(f'ds_write_b128 v{vRA}, {vr(ACC+32+4*k,4)} offset:{k*1024}')
    a('s_waitcnt lgkmcnt(0)')
    a('s_barrier')
    for k in range(8): a(f'ds_read_b128 {vr(ZF+4*k,4)}, v{vRB} offset:{k*1024}')
    a('s_waitcnt lgkmcnt(0)')
    for r in range(8, 32): a(f'v_add_f32 v{ACC+r}, v{ACC+r}, v{ZF+r}')
    for k in range(2, 8): a(f'ds_write_b128 v{vRB}, {vr(ACC+4*k,4)} offset:{k*1024}')
    for r in range(8): a(f'v_add_f32 v{ACC+r}, v{ACC+r}, v{ZF+r}')
    a('s_waitcnt lgkmcnt(0)')
    a('s_barrier')
    for p in range(1, 4):
        a(f's_xor_b32 s{sT0}, s{sW}, {4 ^ p}\n s_mul_i32 s{sT0}, s{sT0}, {REG}\n v_add_u32 v{t0}, s{sT0}, v{vL16}')
        a(f'ds_read_b128 {vr(ZF+8*p,4)}, v{t0} offset:{2*p*1024}')
        a(f'ds_read_b128 {vr(ZF+8*p+4,4)}, v{t0} offset:{(2*p+1)*1024}')
    for r in range(4):
        a(f'v_lshlrev_b32 v{ZF+2*r}, 16, v{XR+r}')
        a(f'v_and_b32 v{ZF+2*r+1}, 0xffff0000, v{XR+r}')
    for r in range(8): a(f'v_add_f32 v{ACC+r}, v{ACC+r}, v{ZF+r}')
    a('s_waitcnt lgkmcnt(0)')
    for p in range(1, 4):
        for r in range(8): a(f'v_add_f32 v{ACC+r}, v{ACC+r}, v{ZF+8*p+r}')
    for r in range(4): a(f'v_cvt_pk_bf16_f32 v{XR+r}, v{ACC+2*r}, v{ACC+2*r+1}')
    a(f'buffer_store_dwordx4 {vr(XR,4)}, v{vXO}, s[{S_OUT}:{S_OUT+3}], 0 offen')
    stamp(a, 10)
    stamp_end(a)
    a('s_endpgm')

def build(opt=None, instr=False):
    opt = opt or {}
    G.instr = instr
    _uid[0] = 0
    HDR = open('cdna_kernels/%s.s.ref' % NAME).read().split('; Override launch')[0]
    a = Asm()
    K = NAME + '_kernel'
    a.l += ['.text', f'.globl {K}', '.p2align 8', f'.type {K},@function', f'{K}:']
    stamp_begin(a)
    a(f'''s_cmp_ge_u32 s2, 512
          s_cbranch_scc1 L_exit
          s_load_dwordx2 s[{S_X}:{S_X+1}], s[0:1], {KA_X}
          s_load_dwordx2 s[{S_WS}:{S_WS+1}], s[0:1], {KA_WS}
          s_load_dwordx2 s[{S_DBG}:{S_DBG+1}], s[0:1], {KA_DBG}
          v_lshrrev_b32 v1, 6, v0
          v_readfirstlane_b32 s{sW}, v1
          v_and_b32 v0, 63, v0
          s_and_b32 s54, s2, 7
          s_bfe_u32 s55, s2, 0x50003
          s_lshr_b32 s{sRB}, s54, 1
          s_lshl_b32 s{sRB}, s{sRB}, 2
          s_and_b32 s{sCT}, s55, 3
          s_add_u32 s{sRB}, s{sRB}, s{sCT}
          s_lshr_b32 s55, s55, 2
          s_and_b32 s54, s54, 1
          s_lshl_b32 s{sCT}, s54, 3
          s_add_u32 s{sCT}, s{sCT}, s55
          s_cmp_ge_u32 s2, 256
          s_cbranch_scc1 L_role_f
          s_load_dwordx2 s[{S_W}:{S_W+1}], s[0:1], {KA_WQKV}''')
    role_a(a, opt)
    a.label('L_role_f')
    a(f'''s_load_dwordx2 s[{S_W}:{S_W+1}], s[0:1], {KA_G}
          s_load_dwordx2 s[{S_U}:{S_U+1}], s[0:1], {KA_U}
          s_load_dwordx2 s[{S_WO}:{S_WO+1}], s[0:1], {KA_WO}
          s_load_dwordx2 s[{S_WD}:{S_WD+1}], s[0:1], {KA_D}
          s_load_dwordx2 s[{S_OUT}:{S_OUT+1}], s[0:1], {KA_OUT}''')
    role_f(a, opt)
    a.label('L_exit')
    a('s_endpgm')
    lines = fix_hazards(a.l)
    for p in check_branches(lines): print('BRANCH HAZARD', p, file=sys.stderr)
    out = HDR + '; @launch grid=(512,1,1) block=(512,1,1) lds=81920\n'
    out += '.amdgcn_target "amdgcn-amd-amdhsa--gfx950"\n' + '\n'.join(lines) + '\n'
    out += f'''.section .rodata,"a"
.p2align 6
.amdhsa_kernel {K}
  .amdhsa_next_free_vgpr 128
  .amdhsa_next_free_sgpr {96 if instr else 64}
  .amdhsa_accum_offset 128
  .amdhsa_group_segment_fixed_size 0
  .amdhsa_kernarg_size 80
  .amdhsa_user_sgpr_count 2
  .amdhsa_user_sgpr_kernarg_segment_ptr 1
  .amdhsa_system_sgpr_workgroup_id_x 1
.end_amdhsa_kernel
'''
    return out

if __name__ == '__main__':
    open('p1.s', 'w').write(build())
    open('p1_i.s', 'w').write(build(instr=True))
```

```python
import sys, struct, math
from dsl import *

NAME = 'parallel_sum__mha_block__glu_gated_reglu__prompt'
WS_K = 0
WS_V = 2 << 20
WS_XN = 4 << 20
WS_Z = 6 << 20
WS_FL = 15 << 20
FL_LN, FL_QKV, FL_H, FL_O = WS_FL, WS_FL + 32768, WS_FL + 65536, WS_FL + 98304
WS_SIZE = 16 << 20
KA_X, KA_WQKV, KA_WO, KA_G, KA_U, KA_D, KA_OUT, KA_DBG, KA_WS = 0, 8, 16, 32, 40, 48, 56, 64, 72
MFMA = 'v_mfma_f32_32x32x16_bf16'
MF16 = 'v_mfma_f32_16x16x32_bf16'
WT = ' sc0 sc1'
SPIN_MAX = 40000

S_X, S_W, S_WS, S_U, S_OUT, S_DBG, S_WO, S_WD, S_G = 4, 8, 12, 28, 36, 40, 44, 48, 56
vPF = 19
sW, sRB, sCT, sCNT = 16, 17, 18, 19
sT0, sT1, sNON, sSPIN = 24, 25, 52, 53

def f32bits(x): return struct.unpack('<I', struct.pack('<f', x))[0]
def srd(a, d, size):
    a(f's_mov_b32 s{d+2}, {size}')
    a(f's_mov_b32 s{d+3}, 0x00020000')

class G:
    instr = False
def stamp(a, i):
    if G.instr:
        a(f's_memrealtime s[{64+2*i}:{65+2*i}]')
        a('s_waitcnt lgkmcnt(0)')
def stamp_begin(a):
    if G.instr:
        a('s_memrealtime s[64:65]')
        a('s_memtime s[60:61]')
        for i in range(1, 11): a(f's_mov_b64 s[{64+2*i}:{65+2*i}], 0')
        a('s_waitcnt lgkmcnt(0)')
def stamp_end(a):
    if G.instr:
        a('s_waitcnt vmcnt(0) lgkmcnt(0)')
        a('s_memrealtime s[86:87]')
        a('s_memtime s[62:63]')
        a('s_getreg_b32 s88, hwreg(HW_REG_HW_ID)')
        a('s_getreg_b32 s89, hwreg(HW_REG_XCC_ID)')
        a('s_waitcnt lgkmcnt(0)')
        a(f's_mov_b32 s{S_WS+2}, 0x10000000')
        a(f's_lshl_b32 s90, s2, 3')
        a(f's_add_u32 s90, s90, s{sW}')
        a(f's_lshl_b32 s90, s90, 6')
        a(f's_add_u32 s90, s90, {32<<20}')
        a('v_mov_b32 v1, 0')
        vals = ['s60', 's62', 's88', 's89'] + [f's{64+2*i}' for i in range(12)]
        for j in range(4):
            for r in range(4): a(f'v_mov_b32 v{4+r}, {vals[4*j+r]}')
            a(f'buffer_store_dwordx4 v[4:7], v1, s[{S_WS}:{S_WS+3}], s90 offen offset:{16*j}')
            a('s_nop 1')

_uid = [0]
def uid(p):
    _uid[0] += 1
    return f'L_{p}{_uid[0]}'

def nonce_issue(a, vN):
    a(f'buffer_load_dword v{vN}, off, s[{S_DBG}:{S_DBG+3}], 0{WT}')
def nonce_finish(a, vN):
    l, d = uid('np'), uid('nd')
    a(f's_mov_b32 s{sSPIN}, {SPIN_MAX}')
    a.label(l)
    a(f'v_readfirstlane_b32 s{sNON}, v{vN}')
    a(f's_cmp_lg_u32 s{sNON}, 0')
    a(f's_cbranch_scc1 {d}')
    a(f's_sub_u32 s{sSPIN}, s{sSPIN}, 1')
    a(f's_cbranch_scc1 {d}')
    a('s_sleep 2')
    nonce_issue(a, vN)
    a('s_waitcnt vmcnt(0)')
    a(f's_branch {l}')
    a.label(d)
def flag_set(a, base, sG, sP, vA, vB):
    a(f's_lshl_b32 s{sT0}, s{sG}, 11')
    a(f's_lshl_b32 s{sT1}, s{sP}, 7')
    a(f's_add_u32 s{sT0}, s{sT0}, s{sT1}')
    a(f's_add_u32 s{sT0}, s{sT0}, {base}')
    a(f'v_mov_b32 v{vA}, s{sNON}')
    a(f'v_mov_b32 v{vB}, 0')
    a('s_mov_b64 exec, 1')
    a(f'buffer_store_dword v{vA}, v{vB}, s[{S_WS}:{S_WS+3}], s{sT0} offen{WT}')
    a('s_mov_b64 exec, -1')
def flag_wait_v(a, base, sG, n, vA, vB, sleep=1):
    l, d = uid('fw'), uid('fd')
    a(f's_lshl_b32 s{sT0}, s{sG}, 11')
    a(f's_add_u32 s{sT0}, s{sT0}, {base}')
    a(f'v_min_u32 v{vB}, {n-1}, v0')
    a(f'v_lshlrev_b32 v{vB}, 7, v{vB}')
    a(f's_mov_b32 s{sSPIN}, {SPIN_MAX}')
    a.label(l)
    a(f'buffer_load_dword v{vA}, v{vB}, s[{S_WS}:{S_WS+3}], s{sT0} offen{WT}')
    a('s_waitcnt vmcnt(0)')
    a(f'v_cmp_ne_u32 vcc, s{sNON}, v{vA}')
    a('s_nop 4')
    a(f's_cbranch_vccz {d}')
    a(f's_sub_u32 s{sSPIN}, s{sSPIN}, 1')
    a(f's_cbranch_scc1 {d}')
    a(f's_sleep {sleep}')
    a(f's_branch {l}')
    a.label(d)
def flag_wait_s(a, base, sG, n, sleep=1):
    l, d = uid('fw'), uid('fd')
    a(f's_lshl_b32 s{sT0}, s{sG}, 11')
    a(f's_add_u32 s{sT0}, s{sT0}, {base}')
    a(f's_add_u32 s{sT0}, s{sT0}, s{S_WS}')
    a(f's_addc_u32 s{sT1}, s{S_WS+1}, 0')
    a(f's_mov_b32 s{sSPIN}, {SPIN_MAX}')
    a.label(l)
    for i in range(n): a(f's_load_dword s{86+i}, s[{sT0}:{sT1}], {i*128} glc')
    a('s_waitcnt lgkmcnt(0)')
    a(f's_xor_b32 s86, s86, s{sNON}')
    for i in range(1, n):
        a(f's_xor_b32 s{86+i}, s{86+i}, s{sNON}')
        a(f's_or_b32 s86, s86, s{86+i}')
    a(f's_cbranch_scc0 {d}')
    a(f's_sub_u32 s{sSPIN}, s{sSPIN}, 1')
    a(f's_cbranch_scc1 {d}')
    a(f's_sleep {sleep}')
    a(f's_branch {l}')
    a.label(d)

def x_dma_voff(a, vD, t):
    a(f'''v_lshrrev_b32 v1, 2, v0
          s_lshl_b32 s{sT0}, s{sW}, 4
          v_add_u32 v1, s{sT0}, v1
          v_lshlrev_b32 v1, 10, v1
          v_lshrrev_b32 v{t}, 4, v0
          v_xor_b32 v{t}, v{t}, v0
          v_and_b32 v{t}, 3, v{t}
          v_lshl_add_u32 v{vD}, v{t}, 4, v1''')
def x_read_base(a, vB0, vB1, t, sBLK):
    a(f'''v_and_b32 v1, 31, v0
          v_lshlrev_b32 v1, 6, v1
          v_add_u32 v1, s{sBLK}, v1
          v_bfe_u32 v{t}, v0, 2, 2
          v_lshrrev_b32 v{t+1}, 5, v0
          v_xor_b32 v{t}, v{t}, v{t+1}
          v_lshl_add_u32 v{vB0}, v{t}, 4, v1
          v_xor_b32 v{vB1}, 32, v{vB0}''')
def w_lane_part(a, t, UP):
    a(f'''v_bfe_u32 v1, v0, 2, 2
          v_lshlrev_b32 v1, 6, v1
          v_bfe_u32 v{t}, v0, 4, 1
          v_lshl_add_u32 v1, v{t}, 5, v1
          v_and_b32 v{t}, 3, v0
          v_lshl_add_u32 v1, v{t}, 3, v1
          v_lshrrev_b32 v{t}, 5, v0
          v_lshl_add_u32 v1, v{t}, {(2*UP).bit_length()-1}, v1''')

def role_a(a, opt):
    SLOT, NS = 14336, 16
    STAT = 73728
    ONES = 65536
    X = opt.get('x', '')
    sXO, sWO = 20, 21
    sEX = 26
    sDX, sDW, sMB = 33, 34, 35
    vDX, vDW = 2, 3
    vX0, vX1, vW0, vW1, vT, vW0b, vW1b = 4, 5, 6, 7, 8, 9, 10
    t0, t1 = 14, 15
    FS = (20, 100)
    ONE, SEL = 48, 52
    ASX, ASQ, ACS = 56, 60, 96
    ACC = 64
    if 'fonly' in X: a('s_branch L_a_end')
    a(f's_setprio {opt.get("prio_qkv", 3)}')
    x_dma_voff(a, vDX, t0)
    a(f'''s_mul_i32 s{sT0}, s{sW}, 12
          v_lshrrev_b32 v1, 2, v0
          v_add_u32 v1, s{sT0}, v1
          v_and_b32 v{t0}, 31, v1
          v_mul_u32_u24 v{t0}, 3072, v{t0}
          v_lshrrev_b32 v1, 5, v1
          v_lshl_add_u32 v{t0}, v1, 10, v{t0}
          v_and_b32 v1, 3, v0
          v_lshl_add_u32 v{t0}, v1, 4, v{t0}
          s_lshl_b32 s{sT0}, s{sCT}, 6
          v_add_u32 v{vDW}, s{sT0}, v{t0}
          s_mul_i32 s{sDW}, s{sW}, 768
          s_lshl_b32 s{sDX}, s{sW}, 10
          s_lshl_b32 s{sXO}, s{sRB}, 17
          s_mov_b32 s{sWO}, 0
          s_and_b32 s{sMB}, s{sW}, 3''')
    def dma_w(st):
        return [f's_add_u32 m0, s{sDW}, {(st%4)*SLOT + 8192}',
                f's_mov_b32 exec_hi, 0xffff\n buffer_load_dwordx4 v{vDW}, s[{S_W}:{S_W+3}], s{sWO} offen lds\n s_mov_b32 exec_hi, -1',
                f's_add_u32 s{sWO}, s{sWO}, {32*3072}']
    def dma_x(st):
        return [f's_add_u32 m0, s{sDX}, {(st%4)*SLOT}',
                f'buffer_load_dwordx4 v{vDX}, s[{S_X}:{S_X+3}], s{sXO} offen lds',
                f's_add_u32 m0, s{sDX}, {((st+1)%4)*SLOT - 64}',
                f'buffer_load_dwordx4 v{vDX}, s[{S_X}:{S_X+3}], s{sXO} offen offset:64 lds',
                f's_add_u32 s{sXO}, s{sXO}, 128']
    for grp in (dma_w(0), dma_x(0), dma_w(1), dma_w(2), dma_x(2), dma_w(3)):
        for x in grp: a(x)
    stamp(a, 1)
    a(f's_lshl_b32 s{sT1}, s{sMB}, 11')
    x_read_base(a, vX0, vX1, t0, sT1)
    a(f'''s_and_b32 s{sT0}, s{sMB}, 2
          s_lshl_b32 s{sT0}, s{sT0}, 4
          v_xor_b32 v{vX0}, s{sT0}, v{vX0}
          v_xor_b32 v{vX1}, s{sT0}, v{vX1}''')
    w_lane_part(a, t0, 256)
    a(f'''s_lshl_b32 s{sT0}, s{sT0}, 5
          s_and_b32 s{sT1}, s{sMB}, 1
          s_cmp_ge_u32 s{sW}, 4
          s_cselect_b32 s{sT1}, 2, s{sT1}
          s_lshl_b32 s{sT1}, s{sT1}, 11
          s_add_u32 s{sT0}, s{sT0}, s{sT1}
          v_add_u32 v{vW0}, s{sT0}, v1
          v_xor_b32 v{vW1}, 1024, v{vW0}
          v_xor_b32 v{vW0b}, 2048, v{vW0}
          v_xor_b32 v{vW1b}, 2048, v{vW1}''')
    a(f'''v_bfe_u32 v{t0}, v0, 4, 1
          v_mul_u32_u24 v{t0}, 3, v{t0}
          v_lshrrev_b32 v{t1}, 5, v0
          v_xor_b32 v{t0}, v{t0}, v{t1}
          v_bfe_u32 v{t1}, v0, 2, 2
          v_xor_b32 v{t0}, v{t0}, v{t1}
          v_and_b32 v1, 15, v0
          v_lshlrev_b32 v1, 6, v1
          v_lshl_add_u32 v1, v{t0}, 4, v1
          v_add_u32 v{vT}, s{sDX}, v1''')
    a(f'''v_and_b32 v{t0}, 15, v0
          v_bfe_u32 v{t1}, v0, 4, 1
          v_cmp_eq_u32 vcc, v{t0}, v{t1}
          v_mov_b32 v{ONE}, 0x3f803f80
          v_cndmask_b32 v{SEL}, 0, v{ONE}, vcc''')
    for r in range(1, 4): a(f'v_mov_b32 v{ONE+r}, v{ONE}\n v_mov_b32 v{SEL+r}, v{SEL}')
    for r in list(range(ASX, ASX+8)) + list(range(ACS, ACS+4)) + list(range(ACC, ACC+32)):
        a(f'v_mov_b32 v{r}, 0')

    def qkv_path(kind):
        nw = 2 if kind == 'qk' else 1
        def reads(st):
            F = FS[st % 2]; o = (st % 4) * SLOT
            r = []
            for ph in range(2):
                r.append(f'ds_read_b128 {vr(F+4*ph,4)}, v{(vX0,vX1)[ph]} offset:{o}')
                for j in range(nw):
                    ad = ((vW0, vW1), (vW0b, vW1b))[j][ph]
                    for t in range(2):
                        r.append(f'ds_read_b64_tr_b16 {vr(F+8+8*j+4*ph+2*t,2)}, v{ad} offset:{o+8192+t*256}')
            r.append(f'ds_read_b128 {vr(F+24,4)}, v{vT} offset:{o}')
            return r
        def mms(st):
            F = FS[st % 2]
            big = []
            for ph in range(2):
                for j in range(nw):
                    d = ACC + 16*j
                    xa, wa = vr(F+4*ph,4), vr(F+8+8*j+4*ph,4)
                    big.append(f'{MFMA} {vr(d,16)}, {xa}, {wa}, {vr(d,16)}' if kind == 'v' else f'{MFMA} {vr(d,16)}, {wa}, {xa}, {vr(d,16)}')
            small = [f'{MF16} {vr(ASQ,4)}, {vr(F+24,4)}, {vr(F+24,4)}, {vr(ASQ,4)}',
                     f'{MF16} {vr(ASX,4)}, {vr(ONE,4)}, {vr(F+24,4)}, {vr(ASX,4)}',
                     f'{MF16} {vr(ACS,4)}, {vr(SEL,4)}, {vr(F+8,4)}, {vr(ACS,4)}']
            if 'nostat' in X: small = []
            if 'nomm' in X: big = []
            return big, small
        def stage(st, vm, with_dma):
            a(f's_waitcnt vmcnt({vm}) lgkmcnt(0)')
            a('s_barrier')
            other = [] if 'nocomp' in X else reads(st)
            if with_dma and 'nodma' not in X:
                if st % 2 == 0: other += dma_x(st + 2)
                other += dma_w(st + 3)
            if st == 0 or 'nocomp' in X:
                for x in other: a(x)
                return
            big, small = mms(st - 1)
            ms = big + small
            per = 3 if kind == 'qk' else 4
            for m in ms:
                a(m)
                for x in other[:per]: a(x)
                other = other[per:]
            for x in other: a(x)
        stage(0, 6, False)
        stamp(a, 8)
        a(f's_mov_b32 s{sCNT}, 3')
        a.label(f'L_a_{kind}_loop')
        for st in range(1, 5): stage(st, 3 if st % 2 == 0 else 4, True)
        a(f's_sub_u32 s{sCNT}, s{sCNT}, 1')
        a(f's_cmp_lg_u32 s{sCNT}, 0')
        a(f's_cbranch_scc1 L_a_{kind}_loop')
        stage(13, 4, False); stage(14, 2, False); stage(15, 0, False)
        a('s_waitcnt lgkmcnt(0)')
        big, small = mms(15)
        for m in small + big: a(m)
    a(f's_cmp_ge_u32 s{sW}, 4')
    a('s_cbranch_scc1 L_a_vloop')
    qkv_path('qk')
    a('s_branch L_a_stats')
    a.label('L_a_vloop')
    qkv_path('v')
    a.label('L_a_stats')
    stamp(a, 2)
    if 'qkvonly' in opt.get('x', ''): a('s_branch L_a_end')
    nonce_issue(a, 47)
    vSX, vSQ = 4, 5
    a(f'''v_and_b32 v{t0}, 3, v0
          v_cmp_eq_u32 vcc, 1, v{t0}
          v_cndmask_b32 v{vSQ}, v{ASQ}, v{ASQ+1}, vcc
          v_cmp_eq_u32 vcc, 2, v{t0}
          v_cndmask_b32 v{vSQ}, v{vSQ}, v{ASQ+2}, vcc
          v_cmp_eq_u32 vcc, 3, v{t0}
          v_cndmask_b32 v{vSQ}, v{vSQ}, v{ASQ+3}, vcc
          v_mul_f32 v{vSX}, {f32bits(1/512):#x}, v{ASX}
          v_mul_f32 v{t0}, v{vSX}, v{vSX}
          v_mul_f32 v{vSQ}, {f32bits(1/512):#x}, v{vSQ}
          v_sub_f32 v{vSQ}, v{vSQ}, v{t0}
          v_max_f32 v{vSQ}, 0, v{vSQ}
          v_cvt_pk_bf16_f32 v{t0}, v{vSX}, v{vSQ}
          v_lshlrev_b32 v{vSX}, 16, v{t0}
          v_and_b32 v{vSQ}, 0xffff0000, v{t0}
          v_add_f32 v{vSQ}, {f32bits(1e-5):#x}, v{vSQ}
          v_cvt_pk_bf16_f32 v{t0}, v{vSQ}, v{vSQ}
          v_lshlrev_b32 v{t0}, 16, v{t0}
          v_sqrt_f32 v{t0}, v{t0}
          v_cvt_pk_bf16_f32 v{t0}, v{t0}, v{t0}
          v_lshlrev_b32 v{t0}, 16, v{t0}
          v_rcp_f32 v{vSQ}, v{t0}
          v_and_b32 v{t0}, 15, v0
          v_lshlrev_b32 v{t0}, 2, v{t0}
          s_lshl_b32 s{sT0}, s{sW}, 6
          s_add_u32 s{sT0}, s{sT0}, {STAT}
          v_add_u32 v{t1}, s{sT0}, v{t0}
          s_mov_b32 s{sEX}, 0x00f0000f
          s_mov_b32 s{sEX+1}, 0xf0000f00
          s_mov_b64 exec, s[{sEX}:{sEX+1}]
          ds_write_b32 v{t1}, v{vSX}
          ds_write_b32 v{t1}, v{vSQ} offset:512''')
    a(f'''s_and_b32 s{sT0}, s{sMB}, 1
          s_cmp_ge_u32 s{sW}, 4
          s_cselect_b32 s{sT0}, 2, s{sT0}
          s_lshl_b32 s{sT0}, s{sT0}, 7
          s_lshr_b32 s{sT1}, s{sMB}, 1
          s_mul_i32 s{sT1}, s{sT1}, 384
          s_add_u32 s{sT0}, s{sT0}, s{sT1}
          s_add_u32 s{sT0}, s{sT0}, {STAT+1024}
          s_mov_b64 exec, 0xffff
          v_add_u32 v{t1}, s{sT0}, v{t0}
          ds_write_b32 v{t1}, v{ACS}
          ds_write_b32 v{t1}, v{ACS+1} offset:64
          s_mov_b64 exec, -1''')
    vL16, vKA, vVA, vMK, vVB, vKB = 2, 3, 6, 7, 8, 9
    Q, KF = 12, 16
    VF = (20, 28)
    PK = 36
    S = (48, 64)
    O = 80
    C = 96
    t0, t1 = 10, 11
    vH = 46
    a(f'v_lshrrev_b32 v{vH}, 5, v0\n v_lshlrev_b32 v{vH}, 4, v{vH}\n v_lshlrev_b32 v{vL16}, 4, v0')
    sOWN = 20
    a(f'''s_lshl_b32 s{sOWN}, s{sCT}, 7
          s_lshl_b32 s{sT1}, s{sRB}, 2
          s_add_u32 s{sOWN}, s{sOWN}, s{sT1}
          s_add_u32 s{sOWN}, s{sOWN}, s{sMB}
          s_lshl_b32 s{sOWN}, s{sOWN}, 10''')
    a('s_waitcnt lgkmcnt(0)')
    a('s_barrier')
    a(f's_cmp_ge_u32 s{sW}, 4')
    a('s_cbranch_scc1 L_a_vepi')
    E0, E1 = 100, 20
    vM, vR = 4, 5
    a(f'''s_lshl_b32 s{sT1}, s{sMB}, 7
          s_add_u32 s{sT1}, s{sT1}, {STAT}
          v_and_b32 v{t0}, 31, v0
          v_lshl_add_u32 v{t0}, v{t0}, 2, s{sT1}
          ds_read_b32 v{vM}, v{t0}
          ds_read_b32 v{vR}, v{t0} offset:512
          v_add_u32 v{t1}, {STAT+1024}, v{vH}''')
    def cs_reads(j):
        for i in range(4):
            a(f'ds_read_b128 {vr(E0+4*i,4)}, v{t1} offset:{128*j+32*i}')
            a(f'ds_read_b128 {vr(E1+4*i,4)}, v{t1} offset:{384+128*j+32*i}')
    cs_reads(1)
    a(f's_bitcmp1_b32 s{sMB}, 0')
    a('s_cbranch_scc0 L_a_noswap')
    for r in range(16): a(f'v_swap_b32 v{ACC+r}, v{ACC+16+r}')
    a.label('L_a_noswap')
    a(f's_lshl_b32 s{sT0}, s{sMB}, 10')
    a(f'v_add_u32 v{t0}, s{sT0}, v{vL16}')
    PKK = 48
    for j in (1, 0):
        a('s_waitcnt lgkmcnt(0)')
        if j == 0: a(f'v_mul_f32 v{vR}, {f32bits(0.25 * math.log2(math.e)):#x}, v{vR}')
        for r in range(16):
            d = ACC + 16*j + r
            a(f'v_add_f32 v{E0+r}, v{E0+r}, v{E1+r}')
            a(f'v_fma_f32 v{d}, -v{vM}, v{E0+r}, v{d}')
            a(f'v_mul_f32 v{d}, v{vR}, v{d}')
        if j == 1: cs_reads(0)
        for hh in range(2):
            o = (PKK + 4*hh) if j == 1 else (Q if hh == 0 else PKK + 8)
            for r in range(4):
                d = ACC + 16*j + 8*hh + 2*r
                a(f'v_cvt_pk_bf16_f32 v{o+r}, v{d}, v{d+1}')
            if j == 1:
                a(f's_add_u32 s{sT1}, s{sOWN}, {WS_K + hh*65536}')
                a(f'buffer_store_dwordx4 {vr(o,4)}, v{vL16}, s[{S_WS}:{S_WS+3}], s{sT1} offen{WT}')
                a(f'ds_write_b128 v{t0}, {vr(o,4)} offset:{32768 + hh*16384}')
            elif hh == 1:
                a(f'ds_write_b128 v{t0}, {vr(o,4)}')
    a('s_branch L_a_epi_done')
    a.label('L_a_vepi')
    a(f'''s_lshl_b32 s{sT1}, s{sMB}, 7
          s_add_u32 s{sT1}, s{sT1}, {STAT}
          v_add_u32 v{t0}, s{sT1}, v{vH}
          v_and_b32 v{t1}, 31, v0
          v_lshlrev_b32 v{t1}, 2, v{t1}
          v_add_u32 v{t1}, {STAT+1024+256}, v{t1}
          ds_read_b32 v4, v{t1}
          ds_read_b32 v5, v{t1} offset:384''')
    for i in range(4):
        a(f'ds_read_b128 {vr(E0+4*i,4)}, v{t0} offset:{32*i}')
        a(f'ds_read_b128 {vr(E1+4*i,4)}, v{t0} offset:{512+32*i}')
    a(f'''v_and_b32 v{t1}, 15, v0
          v_lshlrev_b32 v{t1}, 4, v{t1}
          v_lshl_add_u32 v{t1}, v{vH}, 4, v{t1}
          v_bfe_u32 v1, v0, 4, 1
          v_lshl_add_u32 v{t0}, v1, 16, v{t1}
          v_lshl_add_u32 v{t1}, v1, 14, v{t1}
          s_lshl_b32 s{sT0}, s{sMB}, 10
          v_add_u32 v{t1}, s{sT0}, v{t1}
          s_add_u32 s{sT1}, s{sOWN}, {WS_V}''')
    a('s_waitcnt lgkmcnt(0)')
    a('v_add_f32 v4, v4, v5')
    for r in range(16):
        d = ACC + r
        a(f'v_fma_f32 v{d}, -v{E0+r}, v4, v{d}')
        a(f'v_mul_f32 v{d}, v{E1+r}, v{d}')
    for hh in range(2):
        o = PKK + 4*hh
        for r in range(4):
            d = ACC + 8*hh + 2*r
            a(f'v_cvt_pk_bf16_f32 v{o+r}, v{d}, v{d+1}')
        a(f'buffer_store_dwordx4 {vr(o,4)}, v{t0}, s[{S_WS}:{S_WS+3}], s{sT1} offen offset:{hh*512}{WT}')
        a(f'ds_write_b128 v{t1}, {vr(o,4)} offset:{32768+8192+hh*512}')
    a.label('L_a_epi_done')
    PRIO = opt.get('prio', True); LOWT = opt.get('lowtile', 4); PB = opt.get('pbase', 1)
    sC, sKT, sDSA, sRSK, sHB, sMK = 19, 21, 22, 23, 33, 26
    a(f'''v_and_b32 v{t0}, 11, v0
          v_cmp_eq_u32 vcc, 0, v{t0}
          v_mov_b32 v{t1}, 0x3f803f80
          v_cndmask_b32 v{VF[1]+4}, 0, v{t1}, vcc''')
    for r in range(5, 8): a(f'v_mov_b32 v{VF[1]+r}, v{VF[1]+4}')
    a(f'''s_lshl_b32 s{sT0}, s{sW}, 10
          s_add_u32 s{sT0}, s{sT0}, {ONES}
          v_add_u32 v{t0}, s{sT0}, v{vL16}
          ds_write_b128 v{t0}, {vr(VF[1]+4,4)}''')
    a(f'''s_lshr_b32 s{sHB}, s{sW}, 2
          s_lshl_b32 s{sHB}, s{sHB}, 14
          v_add_u32 v{vKB}, s{sHB}, v{vL16}
          v_lshlrev_b32 v{t0}, 4, v{vH}
          s_add_u32 s{sT0}, s{sHB}, 8192
          v_add_u32 v{t0}, s{sT0}, v{t0}
          v_bfe_u32 v{vMK}, v0, 4, 1
          v_cmp_eq_u32 vcc, 0, v{vMK}
          v_mov_b32 v{t1}, {ONES}
          v_cndmask_b32 v{t0}, v{t1}, v{t0}, vcc
          v_and_b32 v{t1}, 15, v0
          v_lshl_add_u32 v{vVB}, v{t1}, 4, v{t0}
          v_xor_b32 v{vMK}, 1, v{vMK}
          s_mov_b32 s{sRSK}, 32768
          v_add_u32 v{vKA}, s{sRSK}, v{vKB}
          v_mad_u32_u24 v{vVA}, v{vMK}, s{sRSK}, v{vVB}''')
    for r in range(O, O + 16): a(f'v_mov_b32 v{r}, 0')
    for r in range(PK + 4, PK + 8): a(f'v_mov_b32 v{r}, 0')
    a('s_waitcnt lgkmcnt(0)')
    a('s_barrier')
    stamp(a, 3)
    a(f's_setprio {PB+1}')
    a(f'ds_read_b128 {vr(KF,4)}, v{vKA}')
    a(f's_cmp_lt_u32 s{sW}, 4')
    a('s_cbranch_scc1 L_a_haveq')
    a(f's_lshl_b32 s{sT0}, s{sMB}, 10')
    a(f'v_add_u32 v{t0}, s{sT0}, v{vL16}')
    a(f'ds_read_b128 {vr(Q,4)}, v{t0}')
    a.label('L_a_haveq')
    a('s_waitcnt lgkmcnt(0)')
    a(f'ds_read_b128 {vr(VF[0],4)}, v{vVA}')
    a(f'ds_read_b128 {vr(VF[0]+4,4)}, v{vVA} offset:512')
    a(f'{MFMA} {vr(S[1],16)}, {vr(KF,4)}, {vr(Q,4)}, 0')
    def setC(m):
        a(f'v_mov_b32 v{t1}, v{m}')
        a(f'v_permlane32_swap_b32 v{t1}, v{m}')
        a(f'v_max_f32 v{m}, v{m}, v{t1}')
        for r in range(16): a(f'v_sub_f32 v{C+r}, 0, v{m}')
    a(f'v_max3_f32 v{t0}, v{S[1]}, v{S[1]+1}, v{S[1]+2}')
    for r in range(3, 15, 2): a(f'v_max3_f32 v{t0}, v{t0}, v{S[1]+r}, v{S[1]+r+1}')
    a(f'v_max_f32 v{t0}, v{t0}, v{S[1]+15}')
    setC(t0)
    a(f'{MFMA} {vr(S[0],16)}, {vr(KF,4)}, {vr(Q,4)}, {vr(C,16)}')
    a(f'ds_read_b128 {vr(KF,4)}, v{vKA} offset:1024')

    def tile(j, koff, voff, qk=True, h1=None, h2=None, h3=None, h4=None):
        cur, nxt = S[j % 2], S[(j + 1) % 2]
        vc, vn = VF[j % 2], VF[(j + 1) % 2]
        e = lambda r: a(f'v_exp_f32 v{cur+r}, v{cur+r}')
        c = lambda r: a(f'v_cvt_pk_bf16_f32 v{PK+r}, v{cur+2*r}, v{cur+2*r+1}')
        e(0); e(1)
        a(f'{MFMA} {vr(O,16)}, {vr(vn+4,4)}, {vr(PK+4,4)}, {vr(O,16)}')
        a('s_waitcnt lgkmcnt(0)')
        if h1: h1()
        e(2); c(0); e(3); e(4); c(1); e(5)
        if h2: h2()
        e(6)
        if qk: a(f'{MFMA} {vr(nxt,16)}, {vr(KF,4)}, {vr(Q,4)}, {vr(C,16)}')
        if h3: h3()
        if koff is not None: a(f'ds_read_b128 {vr(KF,4)}, v{vKA} offset:{koff}')
        if voff is not None:
            a(f'ds_read_b128 {vr(vn,4)}, v{vVA} offset:{voff}')
            a(f'ds_read_b128 {vr(vn+4,4)}, v{vVA} offset:{voff+512}')
        e(7); c(2); e(8); c(3); e(9); e(10); e(11)
        a(f'{MFMA} {vr(O,16)}, {vr(vc,4)}, {vr(PK,4)}, {vr(O,16)}')
        if h4: h4()
        c(4); e(12); c(5); e(13); e(14); e(15); c(6); c(7)

    def publish():
        a('s_waitcnt vmcnt(0)')
        a('s_barrier')
        a(f's_cmp_lg_u32 s{sW}, 0')
        a('s_cbranch_scc1 L_a_nopub')
        nonce_finish(a, 47)
        flag_set(a, FL_QKV, sCT, sRB, t0, t1)
        a.label('L_a_nopub')
    PUBT = opt.get('pubtile', 1)
    for j in range(4):
        tile(j, (j+2)*1024 if j < 2 else None, (j+1)*1024 if j < 3 else None, qk=(j < 3), h4=(publish if j == PUBT else None))
    stamp(a, 4)
    a(f's_cmp_lg_u32 s{sW}, 0')
    a('s_cbranch_scc1 L_a_nowait')
    if opt.get('apoll', 'v') == 'v': flag_wait_v(a, FL_QKV, sCT, 16, t0, t1)
    else: flag_wait_s(a, FL_QKV, sCT, 16)
    a.label('L_a_nowait')
    sGB = 20
    a(f'''s_lshl_b32 s{sGB}, s{sCT}, 1
          s_lshr_b32 s{sT0}, s{sW}, 2
          s_add_u32 s{sGB}, s{sGB}, s{sT0}
          s_lshl_b32 s{sGB}, s{sGB}, 16
          s_lshl_b32 s{sKT}, s{sRB}, 12''')
    a('s_barrier')
    stamp(a, 5)
    def gaddr(dst, delta_s, delta_c, base):
        a(f's_add_u32 s{dst}, s{sKT}, {delta_c}')
        if delta_s is not None: a(f's_add_u32 s{dst}, s{dst}, s{delta_s}')
        a(f's_and_b32 s{dst}, s{dst}, 0xffff')
        a(f's_add_u32 s{dst}, s{dst}, s{sGB}')
        if base: a(f's_add_u32 s{dst}, s{dst}, {base}')
    sM1, sM2 = 34, 32
    a(f's_lshl_b32 s{sM1}, s{sMB}, 10\n s_lshl_b32 s{sM2}, s{sMB}, 11')
    gaddr(sT0, None, 4096, WS_K)
    a(f'buffer_load_dwordx4 {vr(KF,4)}, v{vL16}, s[{S_WS}:{S_WS+3}], s{sT0} offen')
    a(f's_add_u32 s{sDSA}, s{sHB}, s{sM1}')
    gaddr(sT0, sM1, 5120, WS_K)
    a(f's_add_u32 m0, s{sDSA}, 4096')
    a(f'buffer_load_dwordx4 v{vL16}, s[{S_WS}:{S_WS+3}], s{sT0} offen lds')
    gaddr(sT0, sM1, 4096, WS_V)
    a(f's_add_u32 m0, s{sDSA}, {8192+4096}')
    a(f'buffer_load_dwordx4 v{vL16}, s[{S_WS}:{S_WS+3}], s{sT0} offen lds')
    a(f's_add_u32 s{sDSA}, s{sHB}, s{sM2}')
    a(f's_add_u32 s{sKT}, s{sKT}, s{sM2}')
    def dma_iter():
        a(f's_xor_b32 s{sDSA}, s{sDSA}, 32768')
        a(f's_add_u32 s{sKT}, s{sKT}, 8192')
        for i in range(2):
            gaddr(sT0, None, 1024 + i*1024, WS_K)
            a(f's_add_u32 m0, s{sDSA}, {i*1024}')
            a(f'buffer_load_dwordx4 v{vL16}, s[{S_WS}:{S_WS+3}], s{sT0} offen lds')
        for i in range(2):
            gaddr(sT0, None, i*1024, WS_V)
            a(f's_add_u32 m0, s{sDSA}, {8192 + i*1024}')
            a(f'buffer_load_dwordx4 v{vL16}, s[{S_WS}:{S_WS+3}], s{sT0} offen lds')
    dma_iter()
    a(f'''s_mov_b32 s{sRSK}, 0
          v_mov_b32 v{vKA}, v{vKB}
          v_mov_b32 v{vVA}, v{vVB}
          s_mov_b32 s{sC}, 0''')
    a('s_waitcnt vmcnt(6)')
    a(f'{MFMA} {vr(S[0],16)}, {vr(KF,4)}, {vr(Q,4)}, {vr(C,16)}')
    a('s_waitcnt vmcnt(4)')
    a('s_barrier')
    stamp(a, 6)
    a(f'ds_read_b128 {vr(KF,4)}, v{vKA} offset:4096')
    a(f'ds_read_b128 {vr(VF[0],4)}, v{vVA} offset:4096')
    a(f'ds_read_b128 {vr(VF[0]+4,4)}, v{vVA} offset:{4096+512}')
    a('s_nop 5')
    a('s_branch L_att_mid')
    a.label('L_att_loop')
    for j in range(8):
        if j == 4: a.label('L_att_mid')
        h1 = h2 = h3 = h4 = None
        if j == 7:
            h1 = lambda: a(f's_xor_b32 s{sRSK}, s{sRSK}, 32768')
            def h2():
                a(f'v_add_u32 v{vKA}, s{sRSK}, v{vKB}')
                a(f'v_mad_u32_u24 v{vVA}, v{vMK}, s{sRSK}, v{vVB}')
            def h3():
                a('s_waitcnt vmcnt(0)')
                a('s_barrier')
                if PRIO: a(f's_setprio {PB+1}')
            def h4():
                a(f's_add_u32 s{sC}, s{sC}, 1')
                a(f's_cmp_lt_u32 s{sC}, 8')
        if j == 0:
            def h4():
                a(f's_cmp_lt_u32 s{sC}, 7')
                a('s_cbranch_scc0 L_att_nodma')
                dma_iter()
                a.label('L_att_nodma')
        if j == LOWT and PRIO:
            h4 = lambda: a(f's_setprio {PB}')
        tile(j, ((j+1)%8)*1024, ((j+1)%8)*1024, h1=h1, h2=h2, h3=h3, h4=h4)
    a('s_cbranch_scc1 L_att_loop')
    a(f'{MFMA} {vr(O,16)}, {vr(VF[1]+4,4)}, {vr(PK+4,4)}, {vr(O,16)}')
    a('s_waitcnt lgkmcnt(0)')
    a('s_setprio 3')
    stamp(a, 7)
    a(f'v_mov_b32 v{t0}, {f32bits(2.0**100):#x}')
    a(f'v_cmp_nlt_f32 vcc, v{O+8}, v{t0}')
    a('s_nop 4')
    a('s_cbranch_vccnz L_att_fb')
    a.label('L_att_fin')
    a(f'v_rcp_f32 v{t0}, v{O+8}')
    a(f'''s_lshl_b32 s{sT0}, s{sRB}, 2
          s_add_u32 s{sT0}, s{sT0}, s{sMB}
          s_mul_i32 s{sT0}, s{sT0}, {144*1024}
          s_lshr_b32 s{sT1}, s{sGB}, 6
          s_add_u32 s{sT0}, s{sT0}, s{sT1}
          s_add_u32 s{sT0}, s{sT0}, {WS_Z}''')
    for r in range(8): a(f'v_mul_f32 v{O+r}, v{t0}, v{O+r}')
    for r in range(4): a(f'v_cvt_pk_bf16_f32 v{PK+r}, v{O+2*r}, v{O+2*r+1}')
    a(f'buffer_store_dwordx4 {vr(PK,4)}, v{vL16}, s[{S_WS}:{S_WS+3}], s{sT0} offen{WT}')
    a('s_waitcnt vmcnt(0)')
    a('s_barrier')
    a(f's_cmp_lg_u32 s{sW}, 0')
    a('s_cbranch_scc1 L_a_end')
    flag_set(a, FL_O, sRB, sCT, t0, t1)
    a.label('L_a_end')
    stamp_end(a)
    a('s_endpgm')
    a.label('L_att_fb')
    a(f'''s_add_u32 s{sKT}, s{sGB}, {WS_K}
          s_mov_b32 s{sC}, 0
          s_mov_b32 s{sMK}, 0x0000ffff
          s_mov_b32 s{sMK+1}, 0x0000ffff
          v_mov_b32 v{t0}, 0xff800000''')
    a.label('L_att_fb1')
    a(f'buffer_load_dwordx4 {vr(KF,4)}, v{vL16}, s[{S_WS}:{S_WS+3}], s{sKT} offen')
    a('s_waitcnt vmcnt(0)')
    a(f'{MFMA} {vr(S[0],16)}, {vr(KF,4)}, {vr(Q,4)}, 0')
    for r in range(0, 16, 2): a(f'v_max3_f32 v{t0}, v{t0}, v{S[0]+r}, v{S[0]+r+1}')
    a(f'''s_add_u32 s{sKT}, s{sKT}, 1024
          s_add_u32 s{sC}, s{sC}, 1
          s_cmp_lt_u32 s{sC}, 64
          s_cbranch_scc1 L_att_fb1''')
    setC(t0)
    for r in range(O, O + 16): a(f'v_mov_b32 v{r}, 0')
    a(f'''s_sub_u32 s{sKT}, s{sKT}, 65536
          s_mov_b32 s{sC}, 0
          v_and_b32 v{vVA}, 0x1ff, v{vVB}''')
    a.label('L_att_fb2')
    a(f's_add_u32 s{sT0}, s{sKT}, {WS_V-WS_K}')
    a(f'buffer_load_dwordx4 {vr(KF,4)}, v{vL16}, s[{S_WS}:{S_WS+3}], s{sKT} offen')
    a(f's_mov_b64 exec, s[{sMK}:{sMK+1}]')
    a(f'buffer_load_dwordx4 {vr(VF[0],4)}, v{vVA}, s[{S_WS}:{S_WS+3}], s{sT0} offen')
    a(f'buffer_load_dwordx4 {vr(VF[0]+4,4)}, v{vVA}, s[{S_WS}:{S_WS+3}], s{sT0} offen offset:512')
    a('s_mov_b64 exec, -1')
    a('s_waitcnt vmcnt(0)')
    a(f'{MFMA} {vr(S[0],16)}, {vr(KF,4)}, {vr(Q,4)}, {vr(C,16)}')
    for r in range(16): a(f'v_exp_f32 v{S[0]+r}, v{S[0]+r}')
    for r in range(8): a(f'v_cvt_pk_bf16_f32 v{PK+r}, v{S[0]+2*r}, v{S[0]+2*r+1}')
    a(f'{MFMA} {vr(O,16)}, {vr(VF[0],4)}, {vr(PK,4)}, {vr(O,16)}')
    a(f'{MFMA} {vr(O,16)}, {vr(VF[0]+4,4)}, {vr(PK+4,4)}, {vr(O,16)}')
    a(f'''s_add_u32 s{sKT}, s{sKT}, 1024
          s_add_u32 s{sC}, s{sC}, 1
          s_cmp_lt_u32 s{sC}, 64
          s_nop 7
          s_cbranch_scc1 L_att_fb2''')
    a('s_nop 7')
    a('s_branch L_att_fin')

def role_f(a, opt):
    t0, t1 = 14, 15
    vN, vZ, vL16 = 16, 17, 18
    sJ, sI = 54, 55
    PF = opt.get('prio_f', 0)
    if 'qkvonly' in opt.get('x', ''):
        stamp_end(a); a('s_endpgm')
    a(f's_setprio 3')
    a(f'v_mov_b32 v{vZ}, 0')
    sROW = 20
    vP, vD = 7, 8
    S_W = S_G
    SLOT, R, NS, D = 24576, 3, 16, 3
    sXO, sWOF, sDS, sRS, sDX, sGCT = 21, 22, 23, 26, 27, 32
    vDX, vDW = 2, 3
    vBX0, vBX1, vBW = 4, 5, 6
    vX0, vX1, vW = 9, 10, 11
    FA, FB = 24, 40
    ACC = 64
    a(f's_mul_i32 s{sGCT}, s{sJ}, 7\n s_add_u32 s{sGCT}, s{sGCT}, s{sI}')
    a(f'''s_lshl_b32 s{sT0}, s{sCT}, 3
          s_add_u32 s{sT0}, s{sT0}, s{sW}
          s_bfe_u32 s{sT1}, s{sT0}, 0x20002
          v_and_b32 v{t0}, 3, v0
          v_xor_b32 v{t0}, s{sT1}, v{t0}
          v_lshrrev_b32 v1, 2, v0
          v_lshlrev_b32 v1, 13, v1
          v_lshl_add_u32 v1, v{t0}, 4, v1
          s_lshl_b32 s{sT0}, s{sT0}, 6
          v_add_u32 v{vDX}, s{sT0}, v1''')
    a(f'''v_bfe_u32 v1, v0, 2, 2
          s_lshl_b32 s{sT0}, s{sW}, 2
          v_add_u32 v1, s{sT0}, v1
          v_mul_u32_u24 v{t0}, 3584, v1
          v_lshrrev_b32 v1, 4, v0
          v_lshl_add_u32 v{t0}, v1, 6, v{t0}
          v_and_b32 v1, 3, v0
          v_lshl_add_u32 v{t0}, v1, 4, v{t0}
          s_lshl_b32 s{sT0}, s{sGCT}, 8
          v_add_u32 v{vDW}, s{sT0}, v{t0}
          s_lshl_b32 s{sDX}, s{sW}, 10
          s_lshl_b32 s{sXO}, s{sRB}, 17
          s_add_u32 s{sXO}, s{sXO}, {WS_XN}
          s_and_b32 s{sT1}, s{sW}, 1
          s_lshl_b32 s{sT1}, s{sT1}, 12''')
    x_read_base(a, vBX0, vBX1, t0, sT1)
    w_lane_part(a, t0, 1024)
    a(f'''s_lshr_b32 s{sT0}, s{sW}, 1
          s_lshl_b32 s{sT0}, s{sT0}, 8
          s_add_u32 s{sT0}, s{sT0}, 8192
          v_add_u32 v{vBW}, s{sT0}, v1''')
    X = 24
    a(f'''v_min_u32 v{t0}, 27, v0
          v_cmp_lt_u32 vcc, 13, v{t0}
          v_lshlrev_b32 v{t0}, 7, v{t0}
          v_mov_b32 v{t1}, {3584 - 14*128}
          v_cndmask_b32 v{t1}, 0, v{t1}, vcc
          v_add_u32 v{vP}, v{t0}, v{t1}
          s_bfe_u32 s{sT0}, s2, 0x50003
          s_lshl_b32 s{sT0}, s{sT0}, 3
          s_add_u32 s{sT0}, s{sT0}, s{sW}
          s_mul_i32 s{sT0}, s{sT0}, {2*3584}
          s_mul_i32 s{sT1}, s{sJ}, 1792
          s_add_u32 s{sWOF}, s{sT0}, s{sT1}''')
    a('s_waitcnt lgkmcnt(0)')
    srd(a, S_G, 512*3584); srd(a, S_U, 512*3584); srd(a, S_WO, 512*1024); srd(a, S_WD, 1792*1024); srd(a, S_OUT, 2048*1024)
    a('s_waitcnt vmcnt(1)')
    stamp(a, 1)
    nonce_issue(a, vN)
    for r in range(4):
        a(f'v_lshlrev_b32 v{X+2*r}, 16, v{20+r}')
        a(f'v_and_b32 v{X+2*r+1}, 0xffff0000, v{20+r}')
    def wave_sum(r):
        for m in ('quad_perm:[1,0,3,2]', 'quad_perm:[2,3,0,1]', 'row_half_mirror', 'row_mirror'):
            a(f'v_add_f32_dpp v{r}, v{r}, v{r} {m} row_mask:0xf bank_mask:0xf')
        for op in ('v_permlane16_swap_b32', 'v_permlane32_swap_b32'):
            a(f'v_mov_b32 v{t1}, v{r}')
            a(f'{op} v{t1}, v{r}')
            a(f'v_add_f32 v{r}, v{r}, v{t1}')
    vS, vQ = 12, 13
    a(f'v_add_f32 v{vS}, v{X}, v{X+1}')
    for r in range(2, 8): a(f'v_add_f32 v{vS}, v{vS}, v{X+r}')
    wave_sum(vS)
    a(f'v_mul_f32 v{vS}, {f32bits(1/512):#x}, v{vS}')
    a(f'v_mov_b32 v{vQ}, 0')
    for r in range(8):
        a(f'v_sub_f32 v{t0}, v{X+r}, v{vS}')
        a(f'v_fmac_f32 v{vQ}, v{t0}, v{t0}')
    wave_sum(vQ)
    a(f'''v_mul_f32 v{vQ}, {f32bits(1/512):#x}, v{vQ}
          v_cvt_pk_bf16_f32 v{t0}, v{vS}, v{vQ}
          v_lshlrev_b32 v{vS}, 16, v{t0}
          v_and_b32 v{vQ}, 0xffff0000, v{t0}
          v_add_f32 v{vQ}, {f32bits(1e-5):#x}, v{vQ}
          v_cvt_pk_bf16_f32 v{t0}, v{vQ}, v{vQ}
          v_lshlrev_b32 v{t0}, 16, v{t0}
          v_sqrt_f32 v{t0}, v{t0}
          v_cvt_pk_bf16_f32 v{t0}, v{t0}, v{t0}
          v_lshlrev_b32 v{t0}, 16, v{t0}
          v_rcp_f32 v{vQ}, v{t0}''')
    for r in range(8): a(f'v_sub_f32 v{X+r}, v{X+r}, v{vS}')
    for r in range(4):
        a(f'v_cvt_pk_bf16_f32 v{20+r}, v{X+2*r}, v{X+2*r+1}')
        a(f'v_lshlrev_b32 v{X+2*r}, 16, v{20+r}')
        a(f'v_and_b32 v{X+2*r+1}, 0xffff0000, v{20+r}')
        a(f'v_mul_f32 v{X+2*r}, v{vQ}, v{X+2*r}')
        a(f'v_mul_f32 v{X+2*r+1}, v{vQ}, v{X+2*r+1}')
        a(f'v_cvt_pk_bf16_f32 v{20+r}, v{X+2*r}, v{X+2*r+1}')
    a(f'buffer_store_dwordx4 v[20:23], v{vDX}, s[{S_WS}:{S_WS+3}], s{sXO} offen{WT}')
    for r in list(range(FB, FB+16)) + list(range(ACC, ACC+64)): a(f'v_mov_b32 v{r}, 0')
    if opt.get('pf_gu', 1) == 1:
        a(f'buffer_load_dword v{vD}, v{vP}, s[{S_G}:{S_G+3}], s{sWOF} offen')
        a(f'buffer_load_dword v{vD}, v{vP}, s[{S_U}:{S_U+3}], s{sWOF} offen')
        a('s_waitcnt vmcnt(2)')
    else:
        a('s_waitcnt vmcnt(0)')
    a('s_barrier')
    stamp(a, 2)
    a(f's_cmp_lg_u32 s{sW}, 0')
    a('s_cbranch_scc1 L_f_nopub')
    nonce_finish(a, vN)
    flag_set(a, FL_LN, sRB, sCT, t0, t1)
    a.label('L_f_nopub')
    def dma_w(st):
        return [f's_add_u32 m0, s{sDX}, {(st%3)*SLOT + 8192}',
                f'buffer_load_dwordx4 v{vDW}, s[{S_W}:{S_W+3}], s{sWOF} offen lds',
                f's_add_u32 m0, s{sDX}, {(st%3)*SLOT + 16384}',
                f'buffer_load_dwordx4 v{vDW}, s[{S_U}:{S_U+3}], s{sWOF} offen lds',
                f's_add_u32 s{sWOF}, s{sWOF}, {32*3584}']
    def dma_x(st):
        return [f's_add_u32 m0, s{sDX}, {(st%3)*SLOT}',
                f'buffer_load_dwordx4 v{vL16}, s[{S_WS}:{S_WS+3}], s{sXO} offen lds',
                f's_add_u32 s{sXO}, s{sXO}, 8192']
    a(f's_mov_b32 s{sWOF}, 0')
    a(f's_cmp_ge_u32 s{sI}, 7')
    a('s_cbranch_scc1 L_f_now0')
    for x in dma_w(0) + dma_w(1): a(x)
    a.label('L_f_now0')
    a(f'''v_min_u32 v{vP}, 15, v0
          v_lshlrev_b32 v{vP}, 7, v{vP}
          s_lshl_b32 s{sT0}, s{sI}, 3
          s_add_u32 s{sT0}, s{sT0}, s{sW}
          s_lshl_b32 s{sT0}, s{sT0}, 11
          v_add_u32 v{vP}, s{sT0}, v{vP}''')
    a(f's_cmp_lg_u32 s{sW}, 0')
    a('s_cbranch_scc1 L_f_now1')
    flag_wait_s(a, FL_LN, sRB, 16)
    a.label('L_f_now1')
    a('s_barrier')
    stamp(a, 3)
    if opt.get('pf_xn', 1): a(f'buffer_load_dword v{vD}, v{vP}, s[{S_WS}:{S_WS+3}], s{sXO} offen')
    a(f's_cmp_ge_u32 s{sI}, 7')
    a('s_cbranch_scc1 L_f_idle')
    a(f's_add_u32 s{sXO}, s{sXO}, s{sDX}')
    for x in dma_x(0) + dma_x(1): a(x)
    a(f's_setprio {PF}')
    def reads(F, st, ks):
        o = (st % 3) * SLOT
        r = [f'ds_read_b128 {vr(F+4*i,4)}, v{(vBX0, vBX1)[ks]} offset:{o+i*2048}' for i in range(2)]
        for j in range(2):
            for t in range(2):
                r.append(f'ds_read_b64_tr_b16 {vr(F+8+4*j+2*t,2)}, v{vBW} offset:{o + (4*ks+t)*1024 + j*8192}')
        return r
    def mm(F, other, per):
        for i in range(2):
            for j in range(2):
                d = ACC + 16*(2*i+j)
                a(f'{MFMA} {vr(d,16)}, {vr(F+8+4*j,4)}, {vr(F+4*i,4)}, {vr(d,16)}')
                for x in other[:per]: a(x)
                other = other[per:]
        for x in other: a(x)
    def stage(st, vm, with_dma):
        a(f's_waitcnt vmcnt({vm}) lgkmcnt(0)')
        a('s_barrier')
        d = (dma_x(st+2) + dma_w(st+2)) if with_dma and 'gnodma' not in opt.get('x', '') else []
        if 'gnocomp' in opt.get('x', ''):
            for x in d: a(x)
            return
        mm(FB, reads(FA, st, 0) + d, 3)
        for x in reads(FB, st, 1): a(x)
        a(f's_waitcnt lgkmcnt(6)')
        mm(FA, [], 0)
    a('s_waitcnt vmcnt(1)')
    a(f's_mov_b32 s{sCNT}, 4')
    a.label('L_f_gu_loop')
    for st in range(3): stage(st, 3, True)
    a(f's_sub_u32 s{sCNT}, s{sCNT}, 1')
    a(f's_cmp_lg_u32 s{sCNT}, 0')
    a('s_cbranch_scc1 L_f_gu_loop')
    stage(12, 3, True); stage(13, 3, True); stage(14, 3, False); stage(15, 0, False)
    a('s_waitcnt lgkmcnt(0)')
    mm(FB, [], 0)
    a('s_setprio 3')
    stamp(a, 4)
    a(f'''s_and_b32 s{sT0}, s{sW}, 1
          s_lshl_b32 s{sT0}, s{sT0}, 1
          s_lshl_b32 s{sT1}, s{sRB}, 2
          s_add_u32 s{sT0}, s{sT0}, s{sT1}
          s_mul_i32 s{sT0}, s{sT0}, 144
          s_lshl_b32 s{sT1}, s{sGCT}, 3
          s_add_u32 s{sT0}, s{sT0}, s{sT1}
          s_and_b32 s{sT1}, s{sW}, 6
          s_add_u32 s{sT0}, s{sT0}, s{sT1}
          s_lshl_b32 s{sT0}, s{sT0}, 10
          s_add_u32 s{sT0}, s{sT0}, {WS_Z + 32*1024}''')
    for i in range(2):
        dG, dU = ACC + 32*i, ACC + 32*i + 16
        for r in range(16):
            a(f'v_max_f32 v{dG+r}, 0, v{dG+r}')
            a(f'v_mul_f32 v{dG+r}, v{dU+r}, v{dG+r}')
        for hh in range(2):
            o = dU + 4*hh
            for r in range(4):
                d = dG + 8*hh + 2*r
                a(f'v_cvt_pk_bf16_f32 v{o+r}, v{d}, v{d+1}')
            a(f'buffer_store_dwordx4 {vr(o,4)}, v{vL16}, s[{S_WS}:{S_WS+3}], s{sT0} offen offset:{hh*1024}{WT}')
        if i == 0: a(f's_add_u32 s{sT0}, s{sT0}, {144*1024}')
    a('s_waitcnt vmcnt(0)')
    a('s_barrier')
    a(f's_cmp_lg_u32 s{sW}, 0')
    a('s_cbranch_scc1 L_f_nogu')
    flag_set(a, FL_H, sRB, sGCT, t0, t1)
    a('s_branch L_f_nogu')
    a.label('L_f_idle')
    if opt.get('pf_wd', 1):
        a(f'''v_lshrrev_b32 v{t0}, 2, v0
              v_and_b32 v{t1}, 3, v0
              v_lshlrev_b32 v{t0}, 10, v{t0}
              v_lshl_add_u32 v{vP}, v{t1}, 7, v{t0}
              s_and_b32 s{sT0}, s{sRB}, 3
              s_lshl_b32 s{sT0}, s{sT0}, 3
              s_add_u32 s{sT0}, s{sT0}, s{sW}
              s_lshl_b32 s{sT0}, s{sT0}, 14
              s_lshl_b32 s{sT1}, s{sJ}, 9
              s_add_u32 s{sT0}, s{sT0}, s{sT1}''')
        a(f'buffer_load_dword v{vD}, v{vP}, s[{S_WO}:{S_WO+3}], s{sT0} offen')
        for k in range(4):
            a(f'buffer_load_dword v{vD}, v{vP}, s[{S_WD}:{S_WD+3}], s{sT0} offen')
            a(f's_add_u32 s{sT0}, s{sT0}, {512*1024}')
        a('s_waitcnt vmcnt(0)')
    a.label('L_f_nogu')
    stamp(a, 5)
    sZ0, sZ1, sWOFF, sLB, sNT = 19, 20, 21, 22, 23
    vDW, vRA, vRB, vXO = 3, 4, 5, 6
    XR, WF, ZF, REG = 20, 56, 24, 10240
    a(f'''s_lshr_b32 s{sNT}, s{sCT}, 1
          v_lshrrev_b32 v{t0}, 5, v0
          v_lshlrev_b32 v{t0}, 2, v{t0}
          v_bfe_u32 v{t1}, v0, 2, 2
          v_add_u32 v{t0}, v{t0}, v{t1}
          v_lshlrev_b32 v{t0}, 10, v{t0}
          v_bfe_u32 v{t1}, v0, 4, 1
          v_lshl_add_u32 v{t0}, v{t1}, 6, v{t0}
          v_and_b32 v{t1}, 3, v0
          v_lshl_add_u32 v{t0}, v{t1}, 4, v{t0}
          s_lshl_b32 s{sT0}, s{sNT}, 7
          v_add_u32 v{vDW}, s{sT0}, v{t0}
          s_lshl_b32 s{sWOFF}, s{sW}, 14
          s_mul_i32 s{sLB}, s{sW}, {REG}''')
    NI = 18
    def issue_w(i):
        sl = i % 4
        Sd = S_WD if i < 14 else S_WO
        woff = (i if i < 14 else i - 14) * 8 * 16384
        a(f's_add_u32 m0, s{sLB}, {sl*2048}')
        a(f's_add_u32 s{sT0}, s{sWOFF}, {woff}')
        a(f'buffer_load_dwordx4 v{vDW}, s[{Sd}:{Sd+3}], s{sT0} offen lds')
        a(f's_add_u32 m0, s{sLB}, {sl*2048+1024}')
        a(f's_add_u32 s{sT0}, s{sWOFF}, {woff+8192}')
        a(f'buffer_load_dwordx4 v{vDW}, s[{Sd}:{Sd+3}], s{sT0} offen lds')
    def issue_z(i):
        sl = i % 4
        zoff = (32 + 8*i if i < 14 else 8*(i-14)) * 1024
        a(f's_add_u32 s{sT0}, s{sZ0}, {zoff}')
        a(f'buffer_load_dwordx4 {vr(ZF+8*sl,4)}, v{vL16}, s[{S_WS}:{S_WS+3}], s{sT0} offen')
        a(f's_add_u32 s{sT0}, s{sZ1}, {zoff}')
        a(f'buffer_load_dwordx4 {vr(ZF+8*sl+4,4)}, v{vL16}, s[{S_WS}:{S_WS+3}], s{sT0} offen')
    for i in range(3): issue_w(i)
    a(f'''s_bfe_u32 s{sT0}, s{sW}, 0x10001
          s_lshl_b32 s{sT1}, s{sRB}, 2
          s_add_u32 s{sT0}, s{sT0}, s{sT1}
          s_and_b32 s{sT1}, s{sCT}, 1
          s_lshl_b32 s{sT1}, s{sT1}, 1
          s_add_u32 s{sT0}, s{sT0}, s{sT1}
          s_xor_b32 s{sT1}, s{sT0}, 1
          s_mul_i32 s{sZ0}, s{sT0}, 144
          s_mul_i32 s{sZ1}, s{sT1}, 144
          s_add_u32 s{sZ0}, s{sZ0}, s{sW}
          s_add_u32 s{sZ1}, s{sZ1}, s{sW}
          s_lshl_b32 s{sZ0}, s{sZ0}, 10
          s_lshl_b32 s{sZ1}, s{sZ1}, 10
          s_add_u32 s{sZ0}, s{sZ0}, {WS_Z}
          s_add_u32 s{sZ1}, s{sZ1}, {WS_Z}
          v_and_b32 v{t0}, 31, v0
          s_lshl_b32 s{sT0}, s{sT0}, 5
          v_add_u32 v{t0}, s{sT0}, v{t0}
          v_lshlrev_b32 v{t0}, 10, v{t0}
          v_lshrrev_b32 v{t1}, 5, v0
          v_lshl_add_u32 v{t0}, v{t1}, 4, v{t0}
          s_lshl_b32 s{sT0}, s{sNT}, 7
          s_lshr_b32 s{sT1}, s{sW}, 2
          s_lshl_b32 s{sT1}, s{sT1}, 6
          s_add_u32 s{sT0}, s{sT0}, s{sT1}
          s_and_b32 s{sT1}, s{sW}, 1
          s_lshl_b32 s{sT1}, s{sT1}, 5
          s_add_u32 s{sT0}, s{sT0}, s{sT1}
          v_add_u32 v{vXO}, s{sT0}, v{t0}''')
    a(f'buffer_load_dwordx4 {vr(XR,4)}, v{vXO}, s[{S_X}:{S_X+3}], 0 offen')
    a(f'''v_lshrrev_b32 v{t0}, 5, v0
          v_lshlrev_b32 v{t0}, 9, v{t0}
          v_bfe_u32 v{t1}, v0, 2, 2
          v_lshl_add_u32 v{t0}, v{t1}, 6, v{t0}
          v_bfe_u32 v{t1}, v0, 4, 1
          s_and_b32 s{sT0}, s{sW}, 1
          v_xor_b32 v{t1}, s{sT0}, v{t1}
          v_lshl_add_u32 v{t0}, v{t1}, 5, v{t0}
          v_and_b32 v{t1}, 1, v0
          v_lshl_add_u32 v{t0}, v{t1}, 4, v{t0}
          v_bfe_u32 v{t1}, v0, 1, 1
          v_lshl_add_u32 v{t0}, v{t1}, 3, v{t0}
          s_lshr_b32 s{sT0}, s{sW}, 2
          s_lshl_b32 s{sT0}, s{sT0}, 8
          v_add_u32 v{t0}, s{sT0}, v{t0}
          v_xor_b32 v{t1}, 256, v{t0}
          v_add_u32 v{vRA}, s{sLB}, v{t0}
          v_add_u32 v{vRB}, s{sLB}, v{t1}''')
    a(f's_cmp_lg_u32 s{sW}, 0')
    a('s_cbranch_scc1 L_f_now2')
    flag_wait_s(a, FL_H, sRB, 14, sleep=4)
    a.label('L_f_now2')
    a('s_barrier')
    stamp(a, 6)
    if opt.get('pf_h', 1):
        a(f'''v_min_u32 v{vP}, 55, v0
              v_lshlrev_b32 v{vP}, 7, v{vP}
              s_and_b32 s{sT0}, s{sNT}, 3
              s_lshl_b32 s{sT0}, s{sT0}, 2
              s_lshr_b32 s{sT1}, s{sW}, 1
              s_and_b32 s{sT1}, s{sT1}, 2
              s_add_u32 s{sT0}, s{sT0}, s{sT1}
              s_and_b32 s{sT1}, s{sW}, 1
              s_add_u32 s{sT0}, s{sT0}, s{sT1}
              s_mul_i32 s{sT0}, s{sT0}, 7168
              s_add_u32 s{sT0}, s{sT0}, s{sZ0}
              s_lshl_b32 s{sT1}, s{sW}, 10
              s_sub_u32 s{sT0}, s{sT0}, s{sT1}
              s_add_u32 s{sT0}, s{sT0}, 32768''')
        a(f'buffer_load_dword v{vD}, v{vP}, s[{S_WS}:{S_WS+3}], s{sT0} offen')
    for i in range(3): issue_z(i)
    a(f's_setprio {PF}')
    def kb(i, vm):
        sl = i % 4
        a(f's_waitcnt vmcnt({vm})')
        for j in range(2):
            for t in range(2):
                a(f'ds_read_b64_tr_b16 {vr(WF+4*j+2*t,2)}, v{(vRA,vRB)[j]} offset:{sl*2048+t*1024}')
    def kbm(i):
        sl = i % 4
        for j in range(2):
            a(f's_waitcnt lgkmcnt({2-2*j})')
            for mi in range(2):
                d = ACC + 16*(2*j + mi)
                c = '0' if i == 0 else vr(d,16)
                a(f'{MFMA} {vr(d,16)}, {vr(WF+4*j,4)}, {vr(ZF+8*sl+4*mi,4)}, {c}')
    q = ['z0', 'z0', 'z1', 'z1', 'z2', 'z2']
    def need(tags):
        last = max((k for k, t in enumerate(q) if t in tags), default=-1)
        n = len(q) - 1 - last
        del q[:last+1]
        return n
    for i in range(14):
        kb(i, need({f'z{i}', f'w{i}'}))
        if i + 3 < 14:
            issue_w(i+3); issue_z(i+3); q += [f'w{i+3}']*2 + [f'z{i+3}']*2
        else:
            issue_w(i+3); q += [f'w{i+3}']*2
        kbm(i)
    issue_w(17); q += ['w17']*2
    stamp(a, 7)
    a(f's_cmp_lg_u32 s{sW}, 0')
    a('s_cbranch_scc1 L_f_now3')
    if 'fonly' not in opt.get('x', ''): flag_wait_s(a, FL_O, sRB, 16, sleep=2)
    a.label('L_f_now3')
    a('s_barrier')
    a('s_setprio 3')
    stamp(a, 8)
    for i in range(14, 18):
        issue_z(i); q += [f'z{i}']*2
    for i in range(14, 18):
        kb(i, need({f'z{i}', f'w{i}'}))
        kbm(i)
    stamp(a, 9)
    a(f'v_add_u32 v{vRA}, s{sLB}, v{vL16}')
    a(f's_xor_b32 s{sT0}, s{sW}, 4\n s_mul_i32 s{sT0}, s{sT0}, {REG}\n v_add_u32 v{vRB}, s{sT0}, v{vL16}')
    for k in range(8): a(f'ds_write_b128 v{vRA}, {vr(ACC+32+4*k,4)} offset:{k*1024}')
    a('s_waitcnt lgkmcnt(0)')
    a('s_barrier')
    for k in range(8): a(f'ds_read_b128 {vr(ZF+4*k,4)}, v{vRB} offset:{k*1024}')
    a('s_waitcnt lgkmcnt(0)')
    for r in range(8, 32): a(f'v_add_f32 v{ACC+r}, v{ACC+r}, v{ZF+r}')
    for k in range(2, 8): a(f'ds_write_b128 v{vRB}, {vr(ACC+4*k,4)} offset:{k*1024}')
    for r in range(8): a(f'v_add_f32 v{ACC+r}, v{ACC+r}, v{ZF+r}')
    a('s_waitcnt lgkmcnt(0)')
    a('s_barrier')
    for p in range(1, 4):
        a(f's_xor_b32 s{sT0}, s{sW}, {4 ^ p}\n s_mul_i32 s{sT0}, s{sT0}, {REG}\n v_add_u32 v{t0}, s{sT0}, v{vL16}')
        a(f'ds_read_b128 {vr(ZF+8*p,4)}, v{t0} offset:{2*p*1024}')
        a(f'ds_read_b128 {vr(ZF+8*p+4,4)}, v{t0} offset:{(2*p+1)*1024}')
    for r in range(4):
        a(f'v_lshlrev_b32 v{ZF+2*r}, 16, v{XR+r}')
        a(f'v_and_b32 v{ZF+2*r+1}, 0xffff0000, v{XR+r}')
    for r in range(8): a(f'v_add_f32 v{ACC+r}, v{ACC+r}, v{ZF+r}')
    a('s_waitcnt lgkmcnt(0)')
    for p in range(1, 4):
        for r in range(8): a(f'v_add_f32 v{ACC+r}, v{ACC+r}, v{ZF+8*p+r}')
    for r in range(4): a(f'v_cvt_pk_bf16_f32 v{XR+r}, v{ACC+2*r}, v{ACC+2*r+1}')
    a(f'buffer_store_dwordx4 {vr(XR,4)}, v{vXO}, s[{S_OUT}:{S_OUT+3}], 0 offen')
    stamp(a, 10)
    stamp_end(a)
    a('s_endpgm')

def build(opt=None, instr=False):
    opt = opt or {}
    G.instr = instr
    _uid[0] = 0
    HDR = open('cdna_kernels/%s.s.ref' % NAME).read().split('; Override launch')[0]
    a = Asm()
    K = NAME + '_kernel'
    a.l += ['.text', f'.globl {K}', '.p2align 8', f'.type {K},@function', f'{K}:']
    stamp_begin(a)
    a(f'''s_load_dwordx2 s[{S_X}:{S_X+1}], s[0:1], {KA_X}
          s_load_dwordx2 s[{S_W}:{S_W+1}], s[0:1], {KA_WQKV}
          s_load_dwordx2 s[{S_WS}:{S_WS+1}], s[0:1], {KA_WS}
          s_load_dwordx2 s[{S_DBG}:{S_DBG+1}], s[0:1], {KA_DBG}
          s_cmp_ge_u32 s2, 512
          s_cbranch_scc1 L_exit
          v_lshrrev_b32 v1, 6, v0
          v_readfirstlane_b32 s{sW}, v1
          v_and_b32 v0, 63, v0
          s_and_b32 s54, s2, 7
          s_bfe_u32 s55, s2, 0x50003
          s_lshr_b32 s{sRB}, s54, 1
          s_lshl_b32 s{sRB}, s{sRB}, 2
          s_and_b32 s{sCT}, s55, 3
          s_add_u32 s{sRB}, s{sRB}, s{sCT}
          s_lshr_b32 s55, s55, 2
          s_and_b32 s54, s54, 1
          s_lshl_b32 s{sCT}, s54, 3
          s_add_u32 s{sCT}, s{sCT}, s55
          v_lshlrev_b32 v18, 4, v0''')
    a(f'''s_bfe_u32 s{sT0}, s2, 0x10008
          s_xor_b32 s{sT0}, s{sT0}, 1
          s_lshl_b32 s{sT0}, s{sT0}, 3
          s_xor_b32 s{sT0}, s{sT0}, s{sCT}
          s_lshl_b32 s20, s{sRB}, 4
          s_add_u32 s20, s20, s{sT0}
          s_lshl_b32 s20, s20, 3
          s_add_u32 s20, s20, s{sW}
          s_lshl_b32 s20, s20, 10''')
    a(f'''v_min_u32 v1, 11, v0
          v_lshrrev_b32 v2, 2, v1
          v_and_b32 v1, 3, v1
          v_lshlrev_b32 v1, 7, v1
          v_lshl_add_u32 v1, v2, 10, v1
          s_and_b32 s{sT0}, s2, 0x1f8
          s_add_u32 s{sT0}, s{sT0}, s{sW}
          s_mul_i32 s{sT0}, s{sT0}, 3072
          s_lshl_b32 s{sT1}, s54, 9
          s_add_u32 s{sT0}, s{sT0}, s{sT1}''')
    srd(a, S_X, 2048*1024); srd(a, S_W, 512*3072); srd(a, S_WS, WS_SIZE); srd(a, S_DBG, 256)
    a('s_waitcnt lgkmcnt(0)')
    a(f's_xor_b32 s26, s{sW}, 7')
    a(f's_or_b32 s26, s2, s26')
    a('s_cbranch_scc1 L_a_nonw')
    a(f's_memrealtime s[26:27]')
    a('s_waitcnt lgkmcnt(0)')
    a(f's_or_b32 s26, s26, 1')
    a(f'v_mov_b32 v14, s26')
    a(f'v_mov_b32 v15, 0')
    a(f'buffer_store_dword v14, v15, s[{S_DBG}:{S_DBG+3}], 0 offen{WT}')
    a.label('L_a_nonw')
    a(f'buffer_load_dwordx4 v[20:23], v18, s[{S_X}:{S_X+3}], s20 offen')
    a(f'buffer_load_dword v{vPF}, v1, s[{S_W}:{S_W+3}], s{sT0} offen')
    a('s_cmp_ge_u32 s2, 256')
    a('s_cbranch_scc1 L_role_f')
    if opt.get('pf_code', 1):
        a('s_cmp_ge_u32 s2, 8')
        a('s_cbranch_scc1 L_nocode')
        a(f's_getpc_b64 s[{sT0}:{sT1}]')
        a.label('L_pc')
        a(f's_lshl_b32 s26, s{sW}, 13')
        a(f'v_lshl_add_u32 v1, v0, 7, s26')
        a(f'v_min_u32 v1, L_exit-L_pc, v1')
        a(f'global_load_dword v{vPF}, v1, s[{sT0}:{sT1}]')
        a.label('L_nocode')
    role_a(a, opt)
    a.label('L_role_f')
    a(f'''s_load_dwordx2 s[{S_G}:{S_G+1}], s[0:1], {KA_G}
          s_load_dwordx2 s[{S_U}:{S_U+1}], s[0:1], {KA_U}
          s_load_dwordx2 s[{S_WO}:{S_WO+1}], s[0:1], {KA_WO}
          s_load_dwordx2 s[{S_WD}:{S_WD+1}], s[0:1], {KA_D}
          s_load_dwordx2 s[{S_OUT}:{S_OUT+1}], s[0:1], {KA_OUT}''')
    role_f(a, opt)
    a.label('L_exit')
    a('s_endpgm')
    lines = fix_hazards(a.l)
    for p in check_branches(lines): print('BRANCH HAZARD', p, file=sys.stderr)
    out = HDR + '; @launch grid=(512,1,1) block=(512,1,1) lds=81920\n'
    out += '.amdgcn_target "amdgcn-amd-amdhsa--gfx950"\n' + '\n'.join(lines) + '\n'
    out += f'''.section .rodata,"a"
.p2align 6
.amdhsa_kernel {K}
  .amdhsa_next_free_vgpr 128
  .amdhsa_next_free_sgpr 102
  .amdhsa_accum_offset 128
  .amdhsa_group_segment_fixed_size 0
  .amdhsa_kernarg_size 80
  .amdhsa_user_sgpr_count 2
  .amdhsa_user_sgpr_kernarg_segment_ptr 1
  .amdhsa_system_sgpr_workgroup_id_x 1
.end_amdhsa_kernel
'''
    return out

if __name__ == '__main__':
    NP = dict(pf_gu=0, pf_xn=0, pf_wd=0, pf_h=0, pf_code=0)
    open('p3.s', 'w').write(build(NP))
    open('p3_i.s', 'w').write(build(NP, instr=True))
    open('t_a.s', 'w').write(build(dict(NP, x='fonly'), instr=True))
    open('t_b.s', 'w').write(build(dict(x='fonly'), instr=True))
    open('t_c.s', 'w').write(build(dict(NP, x='fonly gnodma'), instr=True))
    open('t_d.s', 'w').write(build(dict(NP, x='fonly gnocomp'), instr=True))
```

```python
import sys, struct, math
from dsl import *

NAME = 'parallel_sum__mha_block__glu_gated_reglu__prompt'
WS_K = 0
WS_V = 2 << 20
WS_XN = 4 << 20
WS_Z = 6 << 20
WS_FL = 15 << 20
FL_LN, FL_QKV, FL_H, FL_O = WS_FL, WS_FL + 32768, WS_FL + 65536, WS_FL + 98304
WS_SIZE = 16 << 20
KA_X, KA_WQKV, KA_WO, KA_G, KA_U, KA_D, KA_OUT, KA_DBG, KA_WS = 0, 8, 16, 32, 40, 48, 56, 64, 72
MFMA = 'v_mfma_f32_32x32x16_bf16'
MF16 = 'v_mfma_f32_16x16x32_bf16'
SMF = 'v_smfmac_f32_32x32x32_bf16'
WT = ' sc0 sc1'
SPIN_MAX = 40000

S_X, S_W, S_WS, S_U, S_OUT, S_DBG, S_WO, S_WD, S_G = 4, 8, 12, 28, 36, 40, 44, 48, 56
vPF = 19
sW, sRB, sCT, sCNT = 16, 17, 18, 19
sT0, sT1, sNON, sSPIN = 24, 25, 52, 53

def f32bits(x): return struct.unpack('<I', struct.pack('<f', x))[0]
def srd(a, d, size):
    a(f's_mov_b32 s{d+2}, {size}')
    a(f's_mov_b32 s{d+3}, 0x00020000')

class G:
    instr = False
def stamp(a, i):
    if G.instr:
        a(f's_memrealtime s[{64+2*i}:{65+2*i}]')
        a('s_waitcnt lgkmcnt(0)')
def stamp_begin(a):
    if G.instr:
        a('s_memrealtime s[64:65]')
        a('s_memtime s[60:61]')
        for i in range(1, 11): a(f's_mov_b64 s[{64+2*i}:{65+2*i}], 0')
        a('s_waitcnt lgkmcnt(0)')
def stamp_end(a):
    if G.instr:
        a('s_waitcnt vmcnt(0) lgkmcnt(0)')
        a('s_memrealtime s[86:87]')
        a('s_memtime s[62:63]')
        a('s_getreg_b32 s88, hwreg(HW_REG_HW_ID)')
        a('s_getreg_b32 s89, hwreg(HW_REG_XCC_ID)')
        a('s_waitcnt lgkmcnt(0)')
        a(f's_mov_b32 s{S_WS+2}, 0x10000000')
        a(f's_lshl_b32 s90, s2, 3')
        a(f's_add_u32 s90, s90, s{sW}')
        a(f's_lshl_b32 s90, s90, 6')
        a(f's_add_u32 s90, s90, {32<<20}')
        a('v_mov_b32 v1, 0')
        vals = ['s60', 's62', 's88', 's89'] + [f's{64+2*i}' for i in range(12)]
        for j in range(4):
            for r in range(4): a(f'v_mov_b32 v{4+r}, {vals[4*j+r]}')
            a(f'buffer_store_dwordx4 v[4:7], v1, s[{S_WS}:{S_WS+3}], s90 offen offset:{16*j}')
            a('s_nop 1')

_uid = [0]
def uid(p):
    _uid[0] += 1
    return f'L_{p}{_uid[0]}'

def nonce_issue(a, vN, w0=False):
    if w0:
        l = uid('ni')
        a(f's_cmp_lg_u32 s{sW}, 0\n s_cbranch_scc1 {l}')
    a(f'buffer_load_dword v{vN}, off, s[{S_DBG}:{S_DBG+3}], 0{WT}')
    if w0: a.label(l)
def nonce_finish(a, vN):
    l, d = uid('np'), uid('nd')
    a(f's_mov_b32 s{sSPIN}, {SPIN_MAX}')
    a.label(l)
    a(f'v_readfirstlane_b32 s{sNON}, v{vN}')
    a(f's_cmp_lg_u32 s{sNON}, 0')
    a(f's_cbranch_scc1 {d}')
    a(f's_sub_u32 s{sSPIN}, s{sSPIN}, 1')
    a(f's_cbranch_scc1 {d}')
    a('s_sleep 2')
    nonce_issue(a, vN)
    a('s_waitcnt vmcnt(0)')
    a(f's_branch {l}')
    a.label(d)
def flag_set(a, base, sG, sP, vA, vB):
    a(f's_lshl_b32 s{sT0}, s{sG}, 11')
    a(f's_lshl_b32 s{sT1}, s{sP}, 7')
    a(f's_add_u32 s{sT0}, s{sT0}, s{sT1}')
    a(f's_add_u32 s{sT0}, s{sT0}, {base}')
    a(f'v_mov_b32 v{vA}, s{sNON}')
    a(f'v_mov_b32 v{vB}, 0')
    a('s_mov_b64 exec, 1')
    a(f'buffer_store_dword v{vA}, v{vB}, s[{S_WS}:{S_WS+3}], s{sT0} offen{WT}')
    a('s_mov_b64 exec, -1')
def flag_wait_v(a, base, sG, n, vA, vB, sleep=1):
    l, d = uid('fw'), uid('fd')
    a(f's_lshl_b32 s{sT0}, s{sG}, 11')
    a(f's_add_u32 s{sT0}, s{sT0}, {base}')
    a(f'v_min_u32 v{vB}, {n-1}, v0')
    a(f'v_lshlrev_b32 v{vB}, 7, v{vB}')
    a(f's_mov_b32 s{sSPIN}, {SPIN_MAX}')
    a.label(l)
    a(f'buffer_load_dword v{vA}, v{vB}, s[{S_WS}:{S_WS+3}], s{sT0} offen{WT}')
    a('s_waitcnt vmcnt(0)')
    a(f'v_cmp_ne_u32 vcc, s{sNON}, v{vA}')
    a('s_nop 4')
    a(f's_cbranch_vccz {d}')
    a(f's_sub_u32 s{sSPIN}, s{sSPIN}, 1')
    a(f's_cbranch_scc1 {d}')
    a(f's_sleep {sleep}')
    a(f's_branch {l}')
    a.label(d)
def flag_wait_s(a, base, sG, n, sleep=1, gsh=11, stride=128, sP=None):
    l, d = uid('fw'), uid('fd')
    a(f's_lshl_b32 s{sT0}, s{sG}, {gsh}')
    if sP is not None:
        a(f's_lshl_b32 s{sT1}, s{sP}, 7')
        a(f's_add_u32 s{sT0}, s{sT0}, s{sT1}')
    a(f's_add_u32 s{sT0}, s{sT0}, {base}')
    a(f's_add_u32 s{sT0}, s{sT0}, s{S_WS}')
    a(f's_addc_u32 s{sT1}, s{S_WS+1}, 0')
    a(f's_mov_b32 s{sSPIN}, {SPIN_MAX}')
    a.label(l)
    for i in range(n): a(f's_load_dword s{86+i}, s[{sT0}:{sT1}], {i*stride} glc')
    a('s_waitcnt lgkmcnt(0)')
    a(f's_xor_b32 s86, s86, s{sNON}')
    for i in range(1, n):
        a(f's_xor_b32 s{86+i}, s{86+i}, s{sNON}')
        a(f's_or_b32 s86, s86, s{86+i}')
    a(f's_cbranch_scc0 {d}')
    a(f's_sub_u32 s{sSPIN}, s{sSPIN}, 1')
    a(f's_cbranch_scc1 {d}')
    a(f's_sleep {sleep}')
    a(f's_branch {l}')
    a.label(d)

def x_dma_voff(a, vD, t):
    a(f'''v_lshrrev_b32 v1, 2, v0
          s_lshl_b32 s{sT0}, s{sW}, 4
          v_add_u32 v1, s{sT0}, v1
          v_lshlrev_b32 v1, 10, v1
          v_lshrrev_b32 v{t}, 4, v0
          v_xor_b32 v{t}, v{t}, v0
          v_and_b32 v{t}, 3, v{t}
          v_lshl_add_u32 v{vD}, v{t}, 4, v1''')
def x_read_base(a, vB0, vB1, t, sBLK):
    a(f'''v_and_b32 v1, 31, v0
          v_lshlrev_b32 v1, 6, v1
          v_add_u32 v1, s{sBLK}, v1
          v_bfe_u32 v{t}, v0, 2, 2
          v_lshrrev_b32 v{t+1}, 5, v0
          v_xor_b32 v{t}, v{t}, v{t+1}
          v_lshl_add_u32 v{vB0}, v{t}, 4, v1
          v_xor_b32 v{vB1}, 32, v{vB0}''')
def w_lane_part(a, t, UP):
    a(f'''v_bfe_u32 v1, v0, 2, 2
          v_lshlrev_b32 v1, 6, v1
          v_bfe_u32 v{t}, v0, 4, 1
          v_lshl_add_u32 v1, v{t}, 5, v1
          v_and_b32 v{t}, 3, v0
          v_lshl_add_u32 v1, v{t}, 3, v1
          v_lshrrev_b32 v{t}, 5, v0
          v_lshl_add_u32 v1, v{t}, {(2*UP).bit_length()-1}, v1''')

def role_a(a, opt):
    SLOT, NS = 14336, 16
    STAT = 73728
    ONES = 65536
    X = opt.get('x', '')
    sXO, sWO = 20, 21
    sEX = 26
    sDX, sDW, sMB = 33, 34, 35
    vDX, vDW = 2, 3
    vX0, vX1, vW0, vW1, vT, vW0b, vW1b = 4, 5, 6, 7, 8, 9, 10
    t0, t1 = 14, 15
    FS = (20, 100)
    ONE, SEL = 48, 52
    ASX, ASQ, ACS = 56, 60, 96
    ACC = 64
    if 'fonly' in X.split(): a('s_branch L_a_end')
    a(f's_setprio {opt.get("prio_qkv", 3)}')
    x_dma_voff(a, vDX, t0)
    a(f'''s_mul_i32 s{sT0}, s{sW}, 12
          v_lshrrev_b32 v1, 2, v0
          v_add_u32 v1, s{sT0}, v1
          v_and_b32 v{t0}, 31, v1
          v_mul_u32_u24 v{t0}, 3072, v{t0}
          v_lshrrev_b32 v1, 5, v1
          v_lshl_add_u32 v{t0}, v1, 10, v{t0}
          v_and_b32 v1, 3, v0
          v_lshl_add_u32 v{t0}, v1, 4, v{t0}
          s_lshl_b32 s{sT0}, s{sCT}, 6
          v_add_u32 v{vDW}, s{sT0}, v{t0}
          s_mul_i32 s{sDW}, s{sW}, 768
          s_lshl_b32 s{sDX}, s{sW}, 10
          s_lshl_b32 s{sXO}, s{sRB}, 17
          s_mov_b32 s{sWO}, 0
          s_and_b32 s{sMB}, s{sW}, 3''')
    def dma_w(st):
        return [f's_add_u32 m0, s{sDW}, {(st%4)*SLOT + 8192}',
                f's_mov_b32 exec_hi, 0xffff\n buffer_load_dwordx4 v{vDW}, s[{S_W}:{S_W+3}], s{sWO} offen lds\n s_mov_b32 exec_hi, -1',
                f's_add_u32 s{sWO}, s{sWO}, {32*3072}']
    def dma_x(st):
        return [f's_add_u32 m0, s{sDX}, {(st%4)*SLOT}',
                f'buffer_load_dwordx4 v{vDX}, s[{S_X}:{S_X+3}], s{sXO} offen lds',
                f's_add_u32 m0, s{sDX}, {((st+1)%4)*SLOT - 64}',
                f'buffer_load_dwordx4 v{vDX}, s[{S_X}:{S_X+3}], s{sXO} offen offset:64 lds',
                f's_add_u32 s{sXO}, s{sXO}, 128']
    for grp in (dma_w(0), dma_x(0), dma_w(1), dma_w(2), dma_x(2), dma_w(3)):
        for x in grp: a(x)
    stamp(a, 1)
    a(f's_lshl_b32 s{sT1}, s{sMB}, 11')
    x_read_base(a, vX0, vX1, t0, sT1)
    a(f'''s_and_b32 s{sT0}, s{sMB}, 2
          s_lshl_b32 s{sT0}, s{sT0}, 4
          v_xor_b32 v{vX0}, s{sT0}, v{vX0}
          v_xor_b32 v{vX1}, s{sT0}, v{vX1}''')
    w_lane_part(a, t0, 256)
    a(f'''s_lshl_b32 s{sT0}, s{sT0}, 5
          s_and_b32 s{sT1}, s{sMB}, 1
          s_cmp_ge_u32 s{sW}, 4
          s_cselect_b32 s{sT1}, 2, s{sT1}
          s_lshl_b32 s{sT1}, s{sT1}, 11
          s_add_u32 s{sT0}, s{sT0}, s{sT1}
          v_add_u32 v{vW0}, s{sT0}, v1
          v_xor_b32 v{vW1}, 1024, v{vW0}
          v_xor_b32 v{vW0b}, 2048, v{vW0}
          v_xor_b32 v{vW1b}, 2048, v{vW1}''')
    a(f'''v_bfe_u32 v{t0}, v0, 4, 1
          v_mul_u32_u24 v{t0}, 3, v{t0}
          v_lshrrev_b32 v{t1}, 5, v0
          v_xor_b32 v{t0}, v{t0}, v{t1}
          v_bfe_u32 v{t1}, v0, 2, 2
          v_xor_b32 v{t0}, v{t0}, v{t1}
          v_and_b32 v1, 15, v0
          v_lshlrev_b32 v1, 6, v1
          v_lshl_add_u32 v1, v{t0}, 4, v1
          v_add_u32 v{vT}, s{sDX}, v1''')
    a(f'''v_and_b32 v{t0}, 15, v0
          v_bfe_u32 v{t1}, v0, 4, 1
          v_cmp_eq_u32 vcc, v{t0}, v{t1}
          v_mov_b32 v{ONE}, 0x3f803f80
          v_cndmask_b32 v{SEL}, 0, v{ONE}, vcc''')
    for r in range(1, 4): a(f'v_mov_b32 v{ONE+r}, v{ONE}\n v_mov_b32 v{SEL+r}, v{SEL}')
    DM = (11, 12, 13, 16)
    a(f'v_and_b32 v{t0}, 3, v0\n v_mov_b32 v{t1}, {f32bits(1/512):#x}')
    for r in range(4):
        a(f'v_cmp_eq_u32 vcc, {r}, v{t0}')
        a(f'v_cndmask_b32 v{DM[r]}, 0, v{t1}, vcc')
    vSA, vCA = 17, 18
    a(f'''v_and_b32 v{t0}, 15, v0
          v_lshlrev_b32 v{t0}, 2, v{t0}
          s_lshl_b32 s{sT0}, s{sW}, 6
          s_add_u32 s{sT0}, s{sT0}, {STAT}
          v_add_u32 v{vSA}, s{sT0}, v{t0}
          s_and_b32 s{sT0}, s{sMB}, 1
          s_cmp_ge_u32 s{sW}, 4
          s_cselect_b32 s{sT0}, 2, s{sT0}
          s_lshl_b32 s{sT0}, s{sT0}, 7
          s_lshr_b32 s{sT1}, s{sMB}, 1
          s_mul_i32 s{sT1}, s{sT1}, 384
          s_add_u32 s{sT0}, s{sT0}, s{sT1}
          s_add_u32 s{sT0}, s{sT0}, {STAT+1024}
          v_add_u32 v{vCA}, s{sT0}, v{t0}
          s_mov_b32 s{sEX}, 0x00f0000f
          s_mov_b32 s{sEX+1}, 0xf0000f00''')
    for r in list(range(ASX, ASX+8)) + list(range(ACS, ACS+4)) + list(range(ACC, ACC+32)):
        a(f'v_mov_b32 v{r}, 0')

    sZO, vSO = 28, 19
    a(f'''s_lshl_b32 s{sZO}, s{sRB}, 2
          s_add_u32 s{sZO}, s{sZO}, s{sMB}
          s_mul_i32 s{sZO}, s{sZO}, 144
          s_lshl_b32 s{sT0}, s{sCT}, 1
          s_add_u32 s{sZO}, s{sZO}, s{sT0}
          s_lshr_b32 s{sT0}, s{sW}, 2
          s_add_u32 s{sZO}, s{sZO}, s{sT0}
          s_lshl_b32 s{sZO}, s{sZO}, 10
          s_add_u32 s{sZO}, s{sZO}, {WS_Z}''')
    def qkv_path(kind):
        nw = 2 if kind == 'qk' else 1
        def reads(st):
            F = FS[st % 2]; o = (st % 4) * SLOT
            r = []
            for ph in range(2):
                r.append(f'ds_read_b128 {vr(F+4*ph,4)}, v{(vX0,vX1)[ph]} offset:{o}')
                for j in range(nw):
                    ad = ((vW0, vW1), (vW0b, vW1b))[j][ph]
                    for t in range(2):
                        r.append(f'ds_read_b64_tr_b16 {vr(F+8+8*j+4*ph+2*t,2)}, v{ad} offset:{o+8192+t*256}')
            r.append(f'ds_read_b128 {vr(F+24,4)}, v{vT} offset:{o}')
            return r
        def mms(st):
            F = FS[st % 2]
            big = []
            for ph in range(2):
                for j in range(nw):
                    d = ACC + 16*j
                    xa, wa = vr(F+4*ph,4), vr(F+8+8*j+4*ph,4)
                    big.append(f'{MFMA} {vr(d,16)}, {xa}, {wa}, {vr(d,16)}' if kind == 'v' else f'{MFMA} {vr(d,16)}, {wa}, {xa}, {vr(d,16)}')
            small = [f'{MF16} {vr(ASQ,4)}, {vr(F+24,4)}, {vr(F+24,4)}, {vr(ASQ,4)}',
                     f'{MF16} {vr(ASX,4)}, {vr(ONE,4)}, {vr(F+24,4)}, {vr(ASX,4)}',
                     f'{MF16} {vr(ACS,4)}, {vr(SEL,4)}, {vr(F+8,4)}, {vr(ACS,4)}']
            if 'nostat' in X: small = []
            if 'nomm' in X: big = []
            return big, small
        def stage(st, vm, with_dma):
            a(f's_waitcnt vmcnt({vm}) lgkmcnt(0)')
            a('s_barrier')
            other = [] if 'nocomp' in X else reads(st)
            if with_dma and 'nodma' not in X:
                if st % 2 == 0: other += dma_x(st + 2)
                other += dma_w(st + 3)
            if st == 0 or 'nocomp' in X:
                for x in other: a(x)
                return
            big, small = mms(st - 1)
            ms = big + small
            per = 3 if kind == 'qk' else 4
            for m in ms:
                a(m)
                for x in other[:per]: a(x)
                other = other[per:]
            for x in other: a(x)
        stage(0, 6, False)
        stamp(a, 8)
        a(f's_mov_b32 s{sCNT}, 3')
        a.label(f'L_a_{kind}_loop')
        for st in range(1, 5): stage(st, 3 if st % 2 == 0 else 4, True)
        a(f's_sub_u32 s{sCNT}, s{sCNT}, 1')
        a(f's_cmp_lg_u32 s{sCNT}, 0')
        a(f's_cbranch_scc1 L_a_{kind}_loop')
        stage(13, 4, False)
        a(f'v_mov_b32 v2, -1\n v_mov_b32 v3, -1\n v_lshlrev_b32 v{vSO}, 3, v0')
        a(f'buffer_store_dwordx2 v[2:3], v{vSO}, s[{S_WS}:{S_WS+3}], s{sZO} offen{WT}')
        a(f'buffer_store_dwordx2 v[2:3], v{vSO}, s[{S_WS}:{S_WS+3}], s{sZO} offen offset:512{WT}')
        stage(14, 4, False); stage(15, 2, False)
        a('s_waitcnt lgkmcnt(0)')
        big, small = mms(15)
        for m in small + big: a(m)
    a(f's_cmp_ge_u32 s{sW}, 4')
    a('s_cbranch_scc1 L_a_vloop')
    qkv_path('qk')
    a('s_branch L_a_stats')
    a.label('L_a_vloop')
    qkv_path('v')
    a.label('L_a_stats')
    stamp(a, 2)
    if 'qkvonly' in opt.get('x', '') or 'qstop' in X: a('s_branch L_a_end')
    vSX, vSQ = 4, 5
    a(f'''v_mul_f32 v{vSQ}, v{ASQ}, v{DM[0]}
          v_fmac_f32 v{vSQ}, v{ASQ+1}, v{DM[1]}
          v_fmac_f32 v{vSQ}, v{ASQ+2}, v{DM[2]}
          v_fmac_f32 v{vSQ}, v{ASQ+3}, v{DM[3]}
          v_mul_f32 v{vSX}, {f32bits(1/512):#x}, v{ASX}
          s_mov_b64 exec, 0xffff
          ds_write_b32 v{vCA}, v{ACS}
          ds_write_b32 v{vCA}, v{ACS+1} offset:64
          s_mov_b64 exec, s[{sEX}:{sEX+1}]
          v_fma_f32 v{vSQ}, -v{vSX}, v{vSX}, v{vSQ}
          v_max_f32 v{vSQ}, 0, v{vSQ}
          v_cvt_pk_bf16_f32 v{t0}, v{vSX}, v{vSQ}
          v_lshlrev_b32 v{vSX}, 16, v{t0}
          v_and_b32 v{vSQ}, 0xffff0000, v{t0}
          ds_write_b32 v{vSA}, v{vSX}
          v_add_f32 v{vSQ}, {f32bits(1e-5):#x}, v{vSQ}
          v_cvt_pk_bf16_f32 v{t0}, v{vSQ}, v{vSQ}
          v_lshlrev_b32 v{t0}, 16, v{t0}
          v_sqrt_f32 v{t0}, v{t0}
          v_cvt_pk_bf16_f32 v{t0}, v{t0}, v{t0}
          v_lshlrev_b32 v{t0}, 16, v{t0}
          v_rcp_f32 v{vSQ}, v{t0}
          s_nop 0
          ds_write_b32 v{vSA}, v{vSQ} offset:512
          s_mov_b64 exec, -1''')
    vL16, vKA, vVA, vMK, vVB, vKB = 2, 3, 6, 7, 8, 9
    Q, KF = 12, 16
    VF = (20, 28)
    PK = 36
    S = (48, 64)
    O = 80
    C = 96
    t0, t1 = 10, 11
    vH = 46
    a(f'v_lshrrev_b32 v{vH}, 5, v0\n v_lshlrev_b32 v{vH}, 4, v{vH}\n v_lshlrev_b32 v{vL16}, 4, v0')
    sOWN = 20
    a(f'''s_lshl_b32 s{sOWN}, s{sCT}, 7
          s_lshl_b32 s{sT1}, s{sRB}, 2
          s_add_u32 s{sOWN}, s{sOWN}, s{sT1}
          s_add_u32 s{sOWN}, s{sOWN}, s{sMB}
          s_lshl_b32 s{sOWN}, s{sOWN}, 10''')
    nonce_issue(a, 47, True)
    a('s_waitcnt lgkmcnt(0)')
    a('s_barrier')
    a(f's_cmp_ge_u32 s{sW}, 4')
    a('s_cbranch_scc1 L_a_vepi')
    E0, E1 = 100, 20
    vM, vR = 4, 5
    a(f'''s_lshl_b32 s{sT1}, s{sMB}, 7
          s_add_u32 s{sT1}, s{sT1}, {STAT}
          v_and_b32 v{t0}, 31, v0
          v_lshl_add_u32 v{t0}, v{t0}, 2, s{sT1}
          ds_read_b32 v{vM}, v{t0}
          ds_read_b32 v{vR}, v{t0} offset:512
          v_add_u32 v{t1}, {STAT+1024}, v{vH}''')
    def cs_reads(j):
        for i in range(4):
            a(f'ds_read_b128 {vr(E0+4*i,4)}, v{t1} offset:{128*j+32*i}')
            a(f'ds_read_b128 {vr(E1+4*i,4)}, v{t1} offset:{384+128*j+32*i}')
    cs_reads(1)
    a(f's_bitcmp1_b32 s{sMB}, 0')
    a('s_cbranch_scc0 L_a_noswap')
    for r in range(16): a(f'v_swap_b32 v{ACC+r}, v{ACC+16+r}')
    a.label('L_a_noswap')
    a(f's_lshl_b32 s{sT0}, s{sMB}, 10')
    a(f'v_add_u32 v{t0}, s{sT0}, v{vL16}')
    vKP, vKL = 6, 7
    a(f'''v_lshrrev_b32 v{vKP}, 1, v{vL16}
          v_xor_b32 v{vKP}, v{vKP}, v{vL16}
          v_and_b32 v{vKP}, 64, v{vKP}
          v_mul_u32_u24 v{vKP}, 3, v{vKP}
          v_xor_b32 v{vKP}, v{vKP}, v{vL16}
          v_add_u32 v{vKL}, s{sT0}, v{vKP}''')
    PKK = 48
    for j in (1, 0):
        a('s_waitcnt lgkmcnt(0)')
        if j == 0: a(f'v_mul_f32 v{vR}, {f32bits(0.25 * math.log2(math.e)):#x}, v{vR}')
        for r in range(16):
            d = ACC + 16*j + r
            a(f'v_add_f32 v{E0+r}, v{E0+r}, v{E1+r}')
            a(f'v_fma_f32 v{d}, -v{vM}, v{E0+r}, v{d}')
            a(f'v_mul_f32 v{d}, v{vR}, v{d}')
        if j == 1: cs_reads(0)
        for hh in range(2):
            o = (PKK + 4*hh) if j == 1 else (Q if hh == 0 else PKK + 8)
            for r in range(4):
                d = ACC + 16*j + 8*hh + 2*r
                a(f'v_cvt_pk_bf16_f32 v{o+r}, v{d}, v{d+1}')
            if j == 1:
                a(f's_add_u32 s{sT1}, s{sOWN}, {WS_K + hh*65536}')
                a(f'buffer_store_dwordx4 {vr(o,4)}, v{vKP}, s[{S_WS}:{S_WS+3}], s{sT1} offen{WT}')
                a(f'ds_write_b128 v{vKL}, {vr(o,4)} offset:{32768 + hh*16384}')
            elif hh == 1:
                a(f'ds_write_b128 v{t0}, {vr(o,4)}')
    a('s_branch L_a_epi_done')
    a.label('L_a_vepi')
    a(f'''s_lshl_b32 s{sT1}, s{sMB}, 7
          s_add_u32 s{sT1}, s{sT1}, {STAT}
          v_add_u32 v{t0}, s{sT1}, v{vH}
          v_and_b32 v{t1}, 31, v0
          v_lshlrev_b32 v{t1}, 2, v{t1}
          v_add_u32 v{t1}, {STAT+1024+256}, v{t1}
          ds_read_b32 v4, v{t1}
          ds_read_b32 v5, v{t1} offset:384''')
    for i in range(4):
        a(f'ds_read_b128 {vr(E0+4*i,4)}, v{t0} offset:{32*i}')
        a(f'ds_read_b128 {vr(E1+4*i,4)}, v{t0} offset:{512+32*i}')
    a(f'''v_and_b32 v{t1}, 15, v0
          v_lshlrev_b32 v{t1}, 4, v{t1}
          v_lshl_add_u32 v{t1}, v{vH}, 4, v{t1}
          v_bfe_u32 v1, v0, 4, 1
          v_lshl_add_u32 v{t0}, v1, 16, v{t1}
          v_lshl_add_u32 v{t1}, v1, 14, v{t1}
          s_lshl_b32 s{sT0}, s{sMB}, 10
          v_add_u32 v{t1}, s{sT0}, v{t1}
          s_add_u32 s{sT1}, s{sOWN}, {WS_V}''')
    a('s_waitcnt lgkmcnt(0)')
    a('v_add_f32 v4, v4, v5')
    for r in range(16):
        d = ACC + r
        a(f'v_fma_f32 v{d}, -v{E0+r}, v4, v{d}')
        a(f'v_mul_f32 v{d}, v{E1+r}, v{d}')
    for hh in range(2):
        o = PKK + 4*hh
        for r in range(4):
            d = ACC + 8*hh + 2*r
            a(f'v_cvt_pk_bf16_f32 v{o+r}, v{d}, v{d+1}')
        a(f'buffer_store_dwordx4 {vr(o,4)}, v{t0}, s[{S_WS}:{S_WS+3}], s{sT1} offen offset:{hh*512}{WT}')
        a(f'ds_write_b128 v{t1}, {vr(o,4)} offset:{32768+8192+hh*512}')
    a.label('L_a_epi_done')
    PRIO = opt.get('prio', True); LOWT = opt.get('lowtile', 4); PB = opt.get('pbase', 1); LV = opt.get('lv')
    sC, sKT, sDSA, sRSK, sHB, sMK = 19, 21, 22, 23, 33, 26
    a(f'''v_and_b32 v{t0}, 11, v0
          v_cmp_eq_u32 vcc, 0, v{t0}
          v_mov_b32 v{t1}, 0x3f803f80
          v_cndmask_b32 v{VF[1]+4}, 0, v{t1}, vcc''')
    for r in range(5, 8): a(f'v_mov_b32 v{VF[1]+r}, v{VF[1]+4}')
    a(f'''s_lshl_b32 s{sT0}, s{sW}, 10
          s_add_u32 s{sT0}, s{sT0}, {ONES}
          v_add_u32 v{t0}, s{sT0}, v{vL16}
          ds_write_b128 v{t0}, {vr(VF[1]+4,4)}''')
    a(f'''s_lshr_b32 s{sHB}, s{sW}, 2
          s_lshl_b32 s{sHB}, s{sHB}, 14
          v_add_u32 v{vKB}, s{sHB}, v{vL16}
          v_lshlrev_b32 v{t0}, 4, v{vH}
          s_add_u32 s{sT0}, s{sHB}, 8192
          v_add_u32 v{t0}, s{sT0}, v{t0}
          v_bfe_u32 v{vMK}, v0, 4, 1
          v_cmp_eq_u32 vcc, 0, v{vMK}
          v_mov_b32 v{t1}, {ONES}
          v_cndmask_b32 v{t0}, v{t1}, v{t0}, vcc
          v_and_b32 v{t1}, 15, v0
          v_lshl_add_u32 v{vVB}, v{t1}, 4, v{t0}
          v_xor_b32 v{vMK}, 1, v{vMK}
          s_mov_b32 s{sRSK}, 32768
          v_add_u32 v{vKA}, s{sRSK}, v{vKB}
          v_mad_u32_u24 v{vVA}, v{vMK}, s{sRSK}, v{vVB}''')
    for r in range(O, O + 16): a(f'v_mov_b32 v{r}, 0')
    vIX = 40
    a(f'v_mov_b32 v{vIX}, 0xdddddddd')
    a('s_waitcnt vmcnt(0) lgkmcnt(0)')
    a('s_barrier')
    a(f's_cmp_lg_u32 s{sW}, 0')
    a('s_cbranch_scc1 L_a_nopub')
    nonce_finish(a, 47)
    flag_set(a, FL_QKV, sCT, sRB, t0, t1)
    a.label('L_a_nopub')
    stamp(a, 3)
    if 'estop' in X: a('s_branch L_a_end')
    a(f's_setprio {PB+1}')
    a(f'ds_read_b128 {vr(KF,4)}, v{vKA}')
    a(f's_cmp_lt_u32 s{sW}, 4')
    a('s_cbranch_scc1 L_a_haveq')
    a(f's_lshl_b32 s{sT0}, s{sMB}, 10')
    a(f'v_add_u32 v{t0}, s{sT0}, v{vL16}')
    a(f'ds_read_b128 {vr(Q,4)}, v{t0}')
    a.label('L_a_haveq')
    a('s_waitcnt lgkmcnt(0)')
    a(f'ds_read_b128 {vr(VF[0],4)}, v{vVA}')
    a(f'ds_read_b128 {vr(VF[0]+4,4)}, v{vVA} offset:512')
    a(f'{MFMA} {vr(S[1],16)}, {vr(KF,4)}, {vr(Q,4)}, 0')
    def setC(m):
        a(f'v_mov_b32 v{t1}, v{m}')
        a(f'v_permlane32_swap_b32 v{t1}, v{m}')
        a(f'v_max_f32 v{m}, v{m}, v{t1}')
        for r in range(16): a(f'v_sub_f32 v{C+r}, 0, v{m}')
    a(f'v_max3_f32 v{t0}, v{S[1]}, v{S[1]+1}, v{S[1]+2}')
    for r in range(3, 15, 2): a(f'v_max3_f32 v{t0}, v{t0}, v{S[1]+r}, v{S[1]+r+1}')
    a(f'v_max_f32 v{t0}, v{t0}, v{S[1]+15}')
    setC(t0)
    a(f'{MFMA} {vr(S[0],16)}, {vr(KF,4)}, {vr(Q,4)}, {vr(C,16)}')
    a(f'ds_read_b128 {vr(KF,4)}, v{vKA} offset:1024')

    def tile(j, koff, voff, qk=True, p1=True, h1=None, h2=None, h3=None, h4=None):
        cur, nxt = S[j % 2], S[(j + 1) % 2]
        vc, vn = VF[j % 2], VF[(j + 1) % 2]
        e = lambda r: a(f'v_exp_f32 v{cur+r}, v{cur+r}')
        e(0); e(1)
        if p1: a(f'{SMF} {vr(O,16)}, {vr(vn+4,4)}, {vr(nxt+8,8)}, v{vIX}')
        if 'anowait' not in X: a('s_waitcnt lgkmcnt(0)')
        if h1: h1()
        e(2); e(3); e(4)
        if h2: h2()
        e(5)
        if qk: a(f'{MFMA} {vr(nxt,16)}, {vr(KF,4)}, {vr(Q,4)}, {vr(C,16)}')
        if h3: h3()
        if koff is not None: a(f'ds_read_b128 {vr(KF,4)}, v{vKA} offset:{koff}')
        if voff is not None:
            a(f'ds_read_b128 {vr(vn,4)}, v{vVA} offset:{voff}')
            a(f'ds_read_b128 {vr(vn+4,4)}, v{vVA} offset:{voff+512}')
        e(6); e(7); e(8); e(9); e(10)
        a(f'{SMF} {vr(O,16)}, {vr(vc,4)}, {vr(cur,8)}, v{vIX}')
        if h4: h4()
        e(11); e(12); e(13); e(14); e(15)
    for j in range(4):
        tile(j, (j+2)*1024 if j < 2 else None, (j+1)*1024 if j < 3 else None, qk=(j < 3), p1=(j > 0))
    stamp(a, 4)
    if 'ostop' in X: a('s_branch L_a_end')
    a(f's_cmp_lg_u32 s{sW}, 0')
    a('s_cbranch_scc1 L_a_nowait')
    if opt.get('apoll', 'v') == 'v': flag_wait_v(a, FL_QKV, sCT, 16, t0, t1)
    else: flag_wait_s(a, FL_QKV, sCT, 16)
    a.label('L_a_nowait')
    sGB = 20
    a(f'''s_lshl_b32 s{sGB}, s{sCT}, 1
          s_lshr_b32 s{sT0}, s{sW}, 2
          s_add_u32 s{sGB}, s{sGB}, s{sT0}
          s_lshl_b32 s{sGB}, s{sGB}, 16
          s_lshl_b32 s{sKT}, s{sRB}, 12''')
    a('s_barrier')
    stamp(a, 5)
    def gaddr(dst, delta_s, delta_c, base):
        a(f's_add_u32 s{dst}, s{sKT}, {delta_c}')
        if delta_s is not None: a(f's_add_u32 s{dst}, s{dst}, s{delta_s}')
        a(f's_and_b32 s{dst}, s{dst}, 0xffff')
        a(f's_add_u32 s{dst}, s{dst}, s{sGB}')
        if base: a(f's_add_u32 s{dst}, s{dst}, {base}')
    sM1, sM2 = 34, 32
    a(f's_lshl_b32 s{sM1}, s{sMB}, 10\n s_lshl_b32 s{sM2}, s{sMB}, 11')
    gaddr(sT0, None, 4096, WS_K)
    a(f'buffer_load_dwordx4 {vr(KF,4)}, v{vL16}, s[{S_WS}:{S_WS+3}], s{sT0} offen')
    a(f's_add_u32 s{sDSA}, s{sHB}, s{sM1}')
    gaddr(sT0, sM1, 5120, WS_K)
    a(f's_add_u32 m0, s{sDSA}, 4096')
    a(f'buffer_load_dwordx4 v{vL16}, s[{S_WS}:{S_WS+3}], s{sT0} offen lds')
    gaddr(sT0, sM1, 4096, WS_V)
    a(f's_add_u32 m0, s{sDSA}, {8192+4096}')
    a(f'buffer_load_dwordx4 v{vL16}, s[{S_WS}:{S_WS+3}], s{sT0} offen lds')
    a(f's_add_u32 s{sDSA}, s{sHB}, s{sM2}')
    a(f's_add_u32 s{sKT}, s{sKT}, s{sM2}')
    def dma_iter():
        a(f's_xor_b32 s{sDSA}, s{sDSA}, 32768')
        a(f's_add_u32 s{sKT}, s{sKT}, 8192')
        for i in range(2):
            gaddr(sT0, None, 1024 + i*1024, WS_K)
            a(f's_add_u32 m0, s{sDSA}, {i*1024}')
            a(f'buffer_load_dwordx4 v{vL16}, s[{S_WS}:{S_WS+3}], s{sT0} offen lds')
        for i in range(2):
            gaddr(sT0, None, i*1024, WS_V)
            a(f's_add_u32 m0, s{sDSA}, {8192 + i*1024}')
            a(f'buffer_load_dwordx4 v{vL16}, s[{S_WS}:{S_WS+3}], s{sT0} offen lds')
    dma_iter()
    a(f'''s_mov_b32 s{sRSK}, 0
          v_mov_b32 v{vKA}, v{vKB}
          v_mov_b32 v{vVA}, v{vVB}
          s_mov_b32 s{sC}, 0''')
    a('s_waitcnt vmcnt(6)')
    a(f'{MFMA} {vr(S[0],16)}, {vr(KF,4)}, {vr(Q,4)}, {vr(C,16)}')
    a('s_waitcnt vmcnt(4)')
    a('s_barrier')
    stamp(a, 6)
    a(f'ds_read_b128 {vr(KF,4)}, v{vKA} offset:4096')
    a(f'ds_read_b128 {vr(VF[0],4)}, v{vVA} offset:4096')
    a(f'ds_read_b128 {vr(VF[0]+4,4)}, v{vVA} offset:{4096+512}')
    a('s_nop 5')
    a('s_branch L_att_mid')
    a.label('L_att_loop')
    for j in range(8):
        if j == 4: a.label('L_att_mid')
        h1 = h2 = h3 = h4 = None
        if j == 7:
            h1 = lambda: a(f's_xor_b32 s{sRSK}, s{sRSK}, 32768')
            def h2():
                a(f'v_add_u32 v{vKA}, s{sRSK}, v{vKB}')
                a(f'v_mad_u32_u24 v{vVA}, v{vMK}, s{sRSK}, v{vVB}')
            def h3():
                a('s_waitcnt vmcnt(0)')
                if 'anobar' not in X: a('s_barrier')
                if PRIO: a(f's_setprio {PB+1 if not LV else 3}')
            def h4():
                a(f's_add_u32 s{sC}, s{sC}, 1')
                a(f's_cmp_lt_u32 s{sC}, 8')
        if j == 0:
            def h4():
                a(f's_cmp_lt_u32 s{sC}, 7')
                a('s_cbranch_scc0 L_att_nodma')
                dma_iter()
                a.label('L_att_nodma')
        if LV:
            if j == LV[0]: h4 = lambda: a('s_setprio 2')
            if j == LV[1]: h4 = lambda: a('s_setprio 1')
        elif j == LOWT and PRIO:
            h4 = lambda: a(f's_setprio {PB}')
        tile(j, ((j+1)%8)*1024, ((j+1)%8)*1024, h1=h1, h2=h2, h3=h3, h4=h4)
    a('s_cbranch_scc1 L_att_loop')
    a(f'{SMF} {vr(O,16)}, {vr(VF[1]+4,4)}, {vr(S[1]+8,8)}, v{vIX}')
    a('s_waitcnt lgkmcnt(0)')
    a('s_setprio 3')
    stamp(a, 7)
    a(f'v_mov_b32 v{t0}, {f32bits(2.0**100):#x}')
    a(f'v_cmp_nlt_f32 vcc, v{O+8}, v{t0}')
    a('s_nop 4')
    a('s_cbranch_vccnz L_att_fb')
    a.label('L_att_fin')
    a(f'v_rcp_f32 v{t0}, v{O+8}')
    for r in range(8): a(f'v_mul_f32 v{O+r}, v{t0}, v{O+r}')
    for r in range(4): a(f'v_cvt_pk_bf16_f32 v{PK+r}, v{O+2*r}, v{O+2*r+1}')
    for r in range(4): a(f'v_min_u32 v{PK+r}, -2, v{PK+r}')
    a(f'buffer_store_dwordx4 {vr(PK,4)}, v{vL16}, s[{S_WS}:{S_WS+3}], s{sZO} offen{WT}')
    a.label('L_a_end')
    stamp_end(a)
    a('s_endpgm')
    a.label('L_att_fb')
    a(f'''s_add_u32 s{sKT}, s{sGB}, {WS_K}
          s_mov_b32 s{sC}, 0
          s_mov_b32 s{sMK}, 0x0000ffff
          s_mov_b32 s{sMK+1}, 0x0000ffff
          v_mov_b32 v{t0}, 0xff800000''')
    a.label('L_att_fb1')
    a(f'buffer_load_dwordx4 {vr(KF,4)}, v{vL16}, s[{S_WS}:{S_WS+3}], s{sKT} offen')
    a('s_waitcnt vmcnt(0)')
    a(f'{MFMA} {vr(S[0],16)}, {vr(KF,4)}, {vr(Q,4)}, 0')
    for r in range(0, 16, 2): a(f'v_max3_f32 v{t0}, v{t0}, v{S[0]+r}, v{S[0]+r+1}')
    a(f'''s_add_u32 s{sKT}, s{sKT}, 1024
          s_add_u32 s{sC}, s{sC}, 1
          s_cmp_lt_u32 s{sC}, 64
          s_cbranch_scc1 L_att_fb1''')
    setC(t0)
    for r in range(O, O + 16): a(f'v_mov_b32 v{r}, 0')
    a(f'''s_sub_u32 s{sKT}, s{sKT}, 65536
          s_mov_b32 s{sC}, 0
          v_and_b32 v{vVA}, 0x1ff, v{vVB}''')
    a.label('L_att_fb2')
    a(f's_add_u32 s{sT0}, s{sKT}, {WS_V-WS_K}')
    a(f'buffer_load_dwordx4 {vr(KF,4)}, v{vL16}, s[{S_WS}:{S_WS+3}], s{sKT} offen')
    a(f's_mov_b64 exec, s[{sMK}:{sMK+1}]')
    a(f'buffer_load_dwordx4 {vr(VF[0],4)}, v{vVA}, s[{S_WS}:{S_WS+3}], s{sT0} offen')
    a(f'buffer_load_dwordx4 {vr(VF[0]+4,4)}, v{vVA}, s[{S_WS}:{S_WS+3}], s{sT0} offen offset:512')
    a('s_mov_b64 exec, -1')
    a('s_waitcnt vmcnt(0)')
    a(f'{MFMA} {vr(S[0],16)}, {vr(KF,4)}, {vr(Q,4)}, {vr(C,16)}')
    for r in range(16): a(f'v_exp_f32 v{S[0]+r}, v{S[0]+r}')
    a(f'{SMF} {vr(O,16)}, {vr(VF[0],4)}, {vr(S[0],8)}, v{vIX}')
    a(f'{SMF} {vr(O,16)}, {vr(VF[0]+4,4)}, {vr(S[0]+8,8)}, v{vIX}')
    a(f'''s_add_u32 s{sKT}, s{sKT}, 1024
          s_add_u32 s{sC}, s{sC}, 1
          s_cmp_lt_u32 s{sC}, 64
          s_nop 7
          s_cbranch_scc1 L_att_fb2''')
    a('s_nop 7')
    a('s_branch L_att_fin')

def role_f(a, opt):
    t0, t1 = 14, 15
    vN, vZ, vL16 = 16, 17, 18
    sJ, sI = 54, 55
    PF = opt.get('prio_f', 0)
    if 'qkvonly' in opt.get('x', '') or 'aonly' in opt.get('x', ''):
        stamp_end(a); a('s_endpgm')
    a(f's_setprio 3')
    a(f'v_mov_b32 v{vZ}, 0')
    sROW = 20
    vP, vD = 7, 8
    S_W = S_G
    SLOT, R, NS, D = 24576, 3, 16, 3
    sXO, sWOF, sDS, sRS, sDX, sGCT = 21, 22, 23, 26, 27, 32
    vDX, vDW = 2, 3
    vBX0, vBX1, vBW = 4, 5, 6
    vX0, vX1, vW = 9, 10, 11
    FA, FB = 24, 40
    ACC = 64
    a(f's_mul_i32 s{sGCT}, s{sJ}, 7\n s_add_u32 s{sGCT}, s{sGCT}, s{sI}')
    a(f'''s_lshl_b32 s{sT0}, s{sCT}, 3
          s_add_u32 s{sT0}, s{sT0}, s{sW}
          s_bfe_u32 s{sT1}, s{sT0}, 0x20002
          v_and_b32 v{t0}, 3, v0
          v_xor_b32 v{t0}, s{sT1}, v{t0}
          v_lshrrev_b32 v1, 2, v0
          v_lshlrev_b32 v1, 13, v1
          v_lshl_add_u32 v1, v{t0}, 4, v1
          s_lshl_b32 s{sT0}, s{sT0}, 6
          v_add_u32 v{vDX}, s{sT0}, v1''')
    a(f'''v_bfe_u32 v1, v0, 2, 2
          s_lshl_b32 s{sT0}, s{sW}, 2
          v_add_u32 v1, s{sT0}, v1
          v_mul_u32_u24 v{t0}, 3584, v1
          v_lshrrev_b32 v1, 4, v0
          v_lshl_add_u32 v{t0}, v1, 6, v{t0}
          v_and_b32 v1, 3, v0
          v_lshl_add_u32 v{t0}, v1, 4, v{t0}
          s_lshl_b32 s{sT0}, s{sGCT}, 8
          v_add_u32 v{vDW}, s{sT0}, v{t0}
          s_lshl_b32 s{sDX}, s{sW}, 10
          s_lshl_b32 s{sXO}, s{sRB}, 17
          s_add_u32 s{sXO}, s{sXO}, {WS_XN}
          s_and_b32 s{sT1}, s{sW}, 1
          s_lshl_b32 s{sT1}, s{sT1}, 12''')
    x_read_base(a, vBX0, vBX1, t0, sT1)
    w_lane_part(a, t0, 1024)
    a(f'''s_lshr_b32 s{sT0}, s{sW}, 1
          s_lshl_b32 s{sT0}, s{sT0}, 8
          s_add_u32 s{sT0}, s{sT0}, 8192
          v_add_u32 v{vBW}, s{sT0}, v1''')
    X = 24
    a(f'''v_min_u32 v{t0}, 27, v0
          v_cmp_lt_u32 vcc, 13, v{t0}
          v_lshlrev_b32 v{t0}, 7, v{t0}
          v_mov_b32 v{t1}, {3584 - 14*128}
          v_cndmask_b32 v{t1}, 0, v{t1}, vcc
          v_add_u32 v{vP}, v{t0}, v{t1}
          s_bfe_u32 s{sT0}, s2, 0x50003
          s_lshl_b32 s{sT0}, s{sT0}, 3
          s_add_u32 s{sT0}, s{sT0}, s{sW}
          s_mul_i32 s{sT0}, s{sT0}, {2*3584}
          s_mul_i32 s{sT1}, s{sJ}, 1792
          s_add_u32 s{sWOF}, s{sT0}, s{sT1}''')
    a('s_waitcnt lgkmcnt(0)')
    srd(a, S_G, 512*3584); srd(a, S_U, 512*3584); srd(a, S_WO, 512*1024); srd(a, S_WD, 1792*1024); srd(a, S_OUT, 2048*1024)
    a(f's_waitcnt vmcnt({3 if opt.get("p0", 1) == 2 else 1})')
    stamp(a, 1)
    nonce_issue(a, vN, True)
    for r in range(4):
        a(f'v_lshlrev_b32 v{X+2*r}, 16, v{20+r}')
        a(f'v_and_b32 v{X+2*r+1}, 0xffff0000, v{20+r}')
    def wave_sum(r):
        for m in ('quad_perm:[1,0,3,2]', 'quad_perm:[2,3,0,1]', 'row_half_mirror', 'row_mirror'):
            a(f'v_add_f32_dpp v{r}, v{r}, v{r} {m} row_mask:0xf bank_mask:0xf')
        for op in ('v_permlane16_swap_b32', 'v_permlane32_swap_b32'):
            a(f'v_mov_b32 v{t1}, v{r}')
            a(f'{op} v{t1}, v{r}')
            a(f'v_add_f32 v{r}, v{r}, v{t1}')
    vS, vQ = 12, 13
    a(f'v_add_f32 v{vS}, v{X}, v{X+1}')
    for r in range(2, 8): a(f'v_add_f32 v{vS}, v{vS}, v{X+r}')
    wave_sum(vS)
    a(f'v_mul_f32 v{vS}, {f32bits(1/512):#x}, v{vS}')
    a(f'v_mov_b32 v{vQ}, 0')
    for r in range(8):
        a(f'v_sub_f32 v{t0}, v{X+r}, v{vS}')
        a(f'v_fmac_f32 v{vQ}, v{t0}, v{t0}')
    wave_sum(vQ)
    a(f'''v_mul_f32 v{vQ}, {f32bits(1/512):#x}, v{vQ}
          v_cvt_pk_bf16_f32 v{t0}, v{vS}, v{vQ}
          v_lshlrev_b32 v{vS}, 16, v{t0}
          v_and_b32 v{vQ}, 0xffff0000, v{t0}
          v_add_f32 v{vQ}, {f32bits(1e-5):#x}, v{vQ}
          v_cvt_pk_bf16_f32 v{t0}, v{vQ}, v{vQ}
          v_lshlrev_b32 v{t0}, 16, v{t0}
          v_sqrt_f32 v{t0}, v{t0}
          v_cvt_pk_bf16_f32 v{t0}, v{t0}, v{t0}
          v_lshlrev_b32 v{t0}, 16, v{t0}
          v_rcp_f32 v{vQ}, v{t0}''')
    for r in range(8): a(f'v_sub_f32 v{X+r}, v{X+r}, v{vS}')
    for r in range(4):
        a(f'v_cvt_pk_bf16_f32 v{20+r}, v{X+2*r}, v{X+2*r+1}')
        a(f'v_lshlrev_b32 v{X+2*r}, 16, v{20+r}')
        a(f'v_and_b32 v{X+2*r+1}, 0xffff0000, v{20+r}')
        a(f'v_mul_f32 v{X+2*r}, v{vQ}, v{X+2*r}')
        a(f'v_mul_f32 v{X+2*r+1}, v{vQ}, v{X+2*r+1}')
        a(f'v_cvt_pk_bf16_f32 v{20+r}, v{X+2*r}, v{X+2*r+1}')
    a(f'buffer_store_dwordx4 v[20:23], v{vDX}, s[{S_WS}:{S_WS+3}], s{sXO} offen{WT}')
    for r in list(range(FB, FB+16)) + list(range(ACC, ACC+64)): a(f'v_mov_b32 v{r}, 0')
    if opt.get('pf_gu', 1) == 1:
        a(f'buffer_load_dword v{vD}, v{vP}, s[{S_G}:{S_G+3}], s{sWOF} offen')
        a(f'buffer_load_dword v{vD}, v{vP}, s[{S_U}:{S_U+3}], s{sWOF} offen')
        a('s_waitcnt vmcnt(2)')
    else:
        a('s_waitcnt vmcnt(0)')
    a('s_barrier')
    stamp(a, 2)
    a(f's_cmp_lg_u32 s{sW}, 0')
    a('s_cbranch_scc1 L_f_nopub')
    nonce_finish(a, vN)
    flag_set(a, FL_LN, sRB, sCT, t0, t1)
    a.label('L_f_nopub')
    def dma_w(st):
        return [f's_add_u32 m0, s{sDX}, {(st%3)*SLOT + 8192}',
                f'buffer_load_dwordx4 v{vDW}, s[{S_W}:{S_W+3}], s{sWOF} offen lds',
                f's_add_u32 m0, s{sDX}, {(st%3)*SLOT + 16384}',
                f'buffer_load_dwordx4 v{vDW}, s[{S_U}:{S_U+3}], s{sWOF} offen lds',
                f's_add_u32 s{sWOF}, s{sWOF}, {32*3584}']
    def dma_x(st):
        return [f's_add_u32 m0, s{sDX}, {(st%3)*SLOT}',
                f'buffer_load_dwordx4 v{vL16}, s[{S_WS}:{S_WS+3}], s{sXO} offen lds',
                f's_add_u32 s{sXO}, s{sXO}, 8192']
    a(f's_mov_b32 s{sWOF}, 0')
    a(f's_cmp_ge_u32 s{sI}, 7')
    a('s_cbranch_scc1 L_f_idle')
    WE = opt.get('wearly', 0)
    if WE:
        for x in dma_w(0) + dma_w(1): a(x)
    a(f'''v_min_u32 v{vP}, 15, v0
          v_lshlrev_b32 v{vP}, 7, v{vP}
          s_lshl_b32 s{sT0}, s{sI}, 3
          s_add_u32 s{sT0}, s{sT0}, s{sW}
          s_lshl_b32 s{sT0}, s{sT0}, 11
          v_add_u32 v{vP}, s{sT0}, v{vP}''')
    a(f's_cmp_lg_u32 s{sW}, 0')
    a('s_cbranch_scc1 L_f_now1')
    flag_wait_s(a, FL_LN, sRB, 16)
    a.label('L_f_now1')
    a('s_barrier')
    stamp(a, 3)
    if opt.get('pf_xn', 1): a(f'buffer_load_dword v{vD}, v{vP}, s[{S_WS}:{S_WS+3}], s{sXO} offen')
    a(f's_add_u32 s{sXO}, s{sXO}, s{sDX}')
    for x in ((dma_x(0) + dma_x(1)) if WE else (dma_x(0) + dma_w(0) + dma_x(1) + dma_w(1))): a(x)
    a(f's_setprio {opt.get("prio_gu", PF)}')
    def reads(F, st, ks):
        o = (st % 3) * SLOT
        r = [f'ds_read_b128 {vr(F+4*i,4)}, v{(vBX0, vBX1)[ks]} offset:{o+i*2048}' for i in range(2)]
        for j in range(2):
            for t in range(2):
                r.append(f'ds_read_b64_tr_b16 {vr(F+8+4*j+2*t,2)}, v{vBW} offset:{o + (4*ks+t)*1024 + j*8192}')
        return r
    def mms(F):
        return [f'{MFMA} {vr(ACC+16*(2*i+j),16)}, {vr(F+8+4*j,4)}, {vr(F+4*i,4)}, {vr(ACC+16*(2*i+j),16)}' for i in range(2) for j in range(2)]
    def mm(F, other, per):
        for m in mms(F): a(m)
    GV = opt.get('guv', 4)
    def stage(st, vm, with_dma):
        a(f's_waitcnt vmcnt({vm}) lgkmcnt(0)')
        a('s_barrier')
        wd = with_dma and 'gnodma' not in opt.get('x', '')
        dx = dma_x(st+2) if wd else []
        dw = dma_w(st+2) if wd else []
        ra, rb_ = reads(FA, st, 0), reads(FB, st, 1)
        mb_, ma = mms(FB), mms(FA)
        W6 = ['s_waitcnt lgkmcnt(6)']
        if GV == 0:
            seq = [mb_[0]] + ra[:3] + [mb_[1]] + ra[3:] + [mb_[2]] + dx + [mb_[3]] + dw + rb_ + W6 + ma
        elif GV == 1:
            seq = [mb_[0]] + ra[:3] + [mb_[1]] + ra[3:] + [mb_[2]] + dx + [mb_[3]] + rb_ + W6 + [ma[0]] + dw[:2] + [ma[1], ma[2]] + dw[2:] + [ma[3]]
        elif GV == 2:
            seq = [mb_[0]] + ra[:3] + [mb_[1]] + ra[3:] + [mb_[2], mb_[3]] + rb_ + W6 + [ma[0]] + dx + [ma[1]] + dw[:2] + [ma[2]] + dw[2:] + [ma[3]]
        elif GV == 3:
            seq = [mb_[0]] + ra[:3] + [mb_[1]] + ra[3:] + [mb_[2], mb_[3]] + ['s_waitcnt lgkmcnt(0)', ma[0]] + rb_[:3] + [ma[1]] + rb_[3:] + [ma[2]] + dx + dw + [ma[3]]
        elif GV == 4:
            seq = [mb_[0]] + ra[:3] + dx + [mb_[1]] + ra[3:] + [mb_[2]] + dw[:2] + [mb_[3]] + ['s_waitcnt lgkmcnt(0)', ma[0]] + rb_[:3] + [ma[1]] + rb_[3:] + [ma[2]] + dw[2:] + [ma[3]]
        for x in seq: a(x)
    if WE: a('s_waitcnt vmcnt(1)')
    if 'gufine' in opt.get('x', ''):
        for st in range(9):
            stage(st, 3, True)
            a(f's_memrealtime s[{64+2*(st+2)}:{65+2*(st+2)}]')
        G.instr = False
    a(f's_mov_b32 s{sCNT}, {1 if "gufine" in opt.get("x", "") else 4}')
    a.label('L_f_gu_loop')
    for st in range(3): stage(st, 3, True)
    if 'guprog' in opt.get('x', ''):
        for c in range(4):
            l = uid('gp')
            a(f's_cmp_lg_u32 s{sCNT}, {4-c}\n s_cbranch_scc1 {l}')
            a(f's_memrealtime s[{64+2*(7+c)}:{65+2*(7+c)}]')
            a.label(l)
        G.instr = False
    a(f's_sub_u32 s{sCNT}, s{sCNT}, 1')
    a(f's_cmp_lg_u32 s{sCNT}, 0')
    a('s_cbranch_scc1 L_f_gu_loop')
    stage(12, 3, True); stage(13, 3, True); stage(14, 3, False); stage(15, 0, False)
    a('s_waitcnt lgkmcnt(0)')
    mm(FB, [], 0)
    a('s_setprio 3')
    if 'guprog' in opt.get('x', ''): a('s_memrealtime s[72:73]')
    stamp(a, 4)
    a(f'''s_and_b32 s{sT0}, s{sW}, 1
          s_lshl_b32 s{sT0}, s{sT0}, 1
          s_lshl_b32 s{sT1}, s{sRB}, 2
          s_add_u32 s{sT0}, s{sT0}, s{sT1}
          s_mul_i32 s{sT0}, s{sT0}, 144
          s_lshl_b32 s{sT1}, s{sGCT}, 3
          s_add_u32 s{sT0}, s{sT0}, s{sT1}
          s_and_b32 s{sT1}, s{sW}, 6
          s_add_u32 s{sT0}, s{sT0}, s{sT1}
          s_lshl_b32 s{sT0}, s{sT0}, 10
          s_add_u32 s{sT0}, s{sT0}, {WS_Z + 32*1024}''')
    for i in range(2):
        dG, dU = ACC + 32*i, ACC + 32*i + 16
        for r in range(16):
            a(f'v_max_f32 v{dG+r}, 0, v{dG+r}')
            a(f'v_mul_f32 v{dG+r}, v{dU+r}, v{dG+r}')
        for hh in range(2):
            o = dU + 4*hh
            for r in range(4):
                d = dG + 8*hh + 2*r
                a(f'v_cvt_pk_bf16_f32 v{o+r}, v{d}, v{d+1}')
            a(f'buffer_store_dwordx4 {vr(o,4)}, v{vL16}, s[{S_WS}:{S_WS+3}], s{sT0} offen offset:{hh*1024}{WT}')
        if i == 0: a(f's_add_u32 s{sT0}, s{sT0}, {144*1024}')
    def sent_check():
        l = uid('sc')
        a(f's_cmp_lg_u32 s{sW}, 0')
        a(f's_cbranch_scc1 {l}')
        if 'fonly' not in opt.get('x', ''): flag_wait_s(a, FL_QKV, sRB, 16, sleep=4, gsh=7, stride=2048)
        a.label(l)
    sent_check()
    a('s_waitcnt vmcnt(0)')
    a('s_barrier')
    a(f's_cmp_lg_u32 s{sW}, 0')
    a('s_cbranch_scc1 L_f_nogu')
    flag_set(a, FL_H, sRB, sGCT, t0, t1)
    a('s_branch L_f_nogu')
    a.label('L_f_idle')
    sent_check()
    PG = opt.get('pg', 0)
    if PG:
        a(f'''s_and_b32 s{sT0}, s{sRB}, 3
              s_lshl_b32 s{sT0}, s{sT0}, 3
              s_add_u32 s{sT0}, s{sT0}, s{sW}
              s_mul_i32 s{sT0}, s{sT0}, {2*3584}
              s_mul_i32 s{sT1}, s{sJ}, 1792
              s_add_u32 s{sT0}, s{sT0}, s{sT1}''')
        for k in range(1, 8):
            a(f's_add_u32 s{sT0}, s{sT0}, {64*3584}')
            a(f'buffer_load_dword v{vD}, v{vP}, s[{S_G}:{S_G+3}], s{sT0} offen')
            a(f'buffer_load_dword v{vD}, v{vP}, s[{S_U}:{S_U+3}], s{sT0} offen')
            a(f's_waitcnt vmcnt({2*(PG-1)})')
    if opt.get('pf_wd', 1):
        a(f'''v_lshrrev_b32 v{t0}, 2, v0
              v_and_b32 v{t1}, 3, v0
              v_lshlrev_b32 v{t0}, 10, v{t0}
              v_lshl_add_u32 v{vP}, v{t1}, 7, v{t0}
              s_and_b32 s{sT0}, s{sRB}, 3
              s_lshl_b32 s{sT0}, s{sT0}, 3
              s_add_u32 s{sT0}, s{sT0}, s{sW}
              s_lshl_b32 s{sT0}, s{sT0}, 14
              s_lshl_b32 s{sT1}, s{sJ}, 9
              s_add_u32 s{sT0}, s{sT0}, s{sT1}''')
        a(f'buffer_load_dword v{vD}, v{vP}, s[{S_WO}:{S_WO+3}], s{sT0} offen')
        for k in range(4):
            a(f'buffer_load_dword v{vD}, v{vP}, s[{S_WD}:{S_WD+3}], s{sT0} offen')
            a(f's_add_u32 s{sT0}, s{sT0}, {512*1024}')
            a('s_waitcnt vmcnt(0)')
    a.label('L_f_nogu')
    stamp(a, 5)
    sZ0, sWOFF, sLB, sNT = 19, 21, 22, 23
    vDW, vRA, vRB, vXO = 3, 4, 5, 6
    vRW = 12
    R2 = (13, 16, 17)
    XR, ZF = 20, 24
    WB = (96, 112, 56)
    a(f'''s_lshr_b32 s{sNT}, s{sCT}, 1
          v_lshrrev_b32 v{t0}, 5, v0
          v_lshlrev_b32 v{t0}, 2, v{t0}
          v_bfe_u32 v{t1}, v0, 2, 2
          v_add_u32 v{t0}, v{t0}, v{t1}
          v_lshlrev_b32 v{t0}, 10, v{t0}
          v_bfe_u32 v{t1}, v0, 4, 1
          v_lshl_add_u32 v{t0}, v{t1}, 6, v{t0}
          v_and_b32 v{t1}, 3, v0
          v_lshl_add_u32 v{t0}, v{t1}, 4, v{t0}
          s_lshl_b32 s{sT0}, s{sNT}, 7
          v_add_u32 v{vDW}, s{sT0}, v{t0}
          s_lshl_b32 s{sWOFF}, s{sW}, 14
          s_lshl_b32 s{sLB}, s{sW}, 11''')
    def issue_w(r):
        Sd = S_WD if r < 14 else S_WO
        woff = (r if r < 14 else r - 14) * 131072
        o = []
        for hh in range(2):
            o += [f's_add_u32 m0, s{sLB}, {(r%4)*16384 + hh*1024}\n s_add_u32 s{sT0}, s{sWOFF}, {woff + hh*8192}\n buffer_load_dwordx4 v{vDW}, s[{Sd}:{Sd+3}], s{sT0} offen lds']
        return o
    def issue_z(r):
        return [f's_add_u32 s{sT0}, s{sZ0}, {(32 + 8*r + 4*u)*1024}\n buffer_load_dwordx4 {vr(ZF+8*(r%4)+4*u,4)}, v{vL16}, s[{S_WS}:{S_WS+3}], s{sT0} offen' for u in range(2)]
    for r in range(4):
        for x in issue_w(r): a(x)
    a(f'''s_lshr_b32 s{sT0}, s{sW}, 2
          s_lshl_b32 s{sT1}, s{sRB}, 2
          s_add_u32 s{sT0}, s{sT0}, s{sT1}
          s_and_b32 s{sT1}, s{sCT}, 1
          s_lshl_b32 s{sT1}, s{sT1}, 1
          s_add_u32 s{sT0}, s{sT0}, s{sT1}
          s_mul_i32 s{sZ0}, s{sT0}, 144
          s_and_b32 s{sT1}, s{sW}, 3
          s_add_u32 s{sZ0}, s{sZ0}, s{sT1}
          s_lshl_b32 s{sZ0}, s{sZ0}, 10
          s_add_u32 s{sZ0}, s{sZ0}, {WS_Z}
          v_and_b32 v{t0}, 31, v0
          s_lshl_b32 s{sT0}, s{sT0}, 5
          v_add_u32 v{t0}, s{sT0}, v{t0}
          v_lshlrev_b32 v{t0}, 10, v{t0}
          v_lshrrev_b32 v{t1}, 5, v0
          v_lshl_add_u32 v{t0}, v{t1}, 4, v{t0}
          s_lshl_b32 s{sT0}, s{sNT}, 7
          s_lshl_b32 s{sT1}, s{sT1}, 5
          s_add_u32 s{sT0}, s{sT0}, s{sT1}
          v_add_u32 v{vXO}, s{sT0}, v{t0}''')
    a(f'buffer_load_dwordx4 {vr(XR,4)}, v{vXO}, s[{S_X}:{S_X+3}], 0 offen')
    a(f'''v_lshrrev_b32 v{t0}, 5, v0
          v_lshlrev_b32 v{t0}, 9, v{t0}
          v_bfe_u32 v{t1}, v0, 2, 2
          v_lshl_add_u32 v{t0}, v{t1}, 6, v{t0}
          v_bfe_u32 v{t1}, v0, 4, 1
          s_and_b32 s{sT0}, s{sW}, 1
          v_xor_b32 v{t1}, s{sT0}, v{t1}
          v_lshl_add_u32 v{t0}, v{t1}, 5, v{t0}
          v_and_b32 v{t1}, 1, v0
          v_lshl_add_u32 v{t0}, v{t1}, 4, v{t0}
          v_bfe_u32 v{t1}, v0, 1, 1
          v_lshl_add_u32 v{t0}, v{t1}, 3, v{t0}
          s_and_b32 s{sT0}, s{sW}, 2
          s_lshl_b32 s{sT0}, s{sT0}, 7
          s_and_b32 s{sT1}, s{sW}, 3
          s_lshl_b32 s{sT1}, s{sT1}, 11
          s_add_u32 s{sT0}, s{sT0}, s{sT1}
          v_add_u32 v{vRA}, s{sT0}, v{t0}
          v_xor_b32 v{vRB}, 256, v{vRA}
          s_mul_i32 s{sT0}, s{sW}, 6144
          s_add_u32 s{sT0}, s{sT0}, 32768
          v_add_u32 v{vRW}, s{sT0}, v{vL16}''')
    for p in range(1, 4):
        a(f's_xor_b32 s{sT0}, s{sW}, {p}\n s_mul_i32 s{sT0}, s{sT0}, 6144\n s_add_u32 s{sT0}, s{sT0}, 32768\n v_add_u32 v{R2[p-1]}, s{sT0}, v{vL16}')
    for r in range(8, 32): a(f'v_mov_b32 v{ACC+r}, 0')
    FO = 'fonly' in opt.get('x', '')
    a(f's_cmp_lg_u32 s{sW}, 0')
    a('s_cbranch_scc1 L_f_now2')
    flag_wait_s(a, FL_H, sRB, 14, sleep=opt.get('hsleep', 1))
    a.label('L_f_now2')
    a('s_waitcnt vmcnt(0)')
    a('s_barrier')
    stamp(a, 6)
    q = []
    for r in range(4):
        for x in issue_z(r): a(x)
        q += [f'z{r}']*2
    for r in range(4):
        a(f'v_lshlrev_b32 v{ACC+2*r}, 16, v{XR+r}')
        a(f'v_and_b32 v{ACC+2*r+1}, 0xffff0000, v{XR+r}')
    a(f's_setprio {PF}')
    def need(tags):
        last = max((k for k, t in enumerate(q) if t in tags), default=-1)
        n = len(q) - 1 - last
        del q[:last+1]
        return n
    def wreads(r, B):
        return [f'ds_read_b64_tr_b16 {vr(B+8*u+4*j+2*t,2)}, v{(vRA,vRB)[j]} offset:{(r%4)*16384 + u*8192 + t*1024}' for u in range(2) for j in range(2) for t in range(2)]
    def dmm(B, Z):
        return [f'{MFMA} {vr(ACC+16*j,16)}, {vr(B+8*u+4*j,4)}, {vr(Z+4*u,4)}, {vr(ACC+16*j,16)}' for u in range(2) for j in range(2)]
    for x in wreads(0, WB[0]): a(x)
    for p in range(1, 15):
        a(f's_waitcnt vmcnt({need({f"w{p}", f"z{p-1}"})}) lgkmcnt(0)')
        a('s_barrier')
        ms = dmm(WB[(p-1) % 2], ZF + 8*((p-1) % 4))
        rd = wreads(p, WB[p % 2])
        iw = issue_w(p + 3); q += [f'w{p+3}']*2
        iz = []
        if p + 3 < 14:
            iz = issue_z(p + 3); q += [f'z{p+3}']*2
        for x in [ms[0]] + rd[:4] + [ms[1]] + rd[4:] + [ms[2]] + iw + [ms[3]] + iz: a(x)
    stamp(a, 7)
    NL = opt.get('nlight', 2)
    sPP = 26
    a(f's_add_u32 s{sPP}, s{sZ0}, s{S_WS}')
    a(f's_addc_u32 s{sPP+1}, s{S_WS+1}, 0')
    def light():
        for i in range(NL): a(f's_load_dword s{86+i}, s[{sPP}:{sPP+1}], {i*(8//NL)*4096 + 1020} glc')
    light()
    a('s_waitcnt vmcnt(0)')
    a('s_barrier')
    for x in wreads(15, WB[1]): a(x)
    a('s_setprio 3')
    a('s_waitcnt lgkmcnt(0)')
    a('s_barrier')
    stamp(a, 8)
    sDN = 20
    a(f's_mov_b32 s{sSPIN}, {SPIN_MAX}')
    a.label('L_f_lp')
    for i in range(1, NL): a(f's_max_u32 s86, s86, s{86+i}')
    a('s_cmp_lg_u32 s86, -1')
    a('s_cbranch_scc1 L_f_lpd')
    a(f's_sub_u32 s{sSPIN}, s{sSPIN}, 1')
    a('s_cbranch_scc1 L_f_lpd')
    if opt.get("lsleep", 0): a(f's_sleep {opt.get("lsleep")}')
    light()
    a('s_waitcnt lgkmcnt(0)')
    if not FO: a('s_branch L_f_lp')
    a.label('L_f_lpd')
    a(f's_mov_b32 s{sDN}, 0')
    a(f's_mov_b32 s{sSPIN}, {SPIN_MAX}')
    a.label('L_f_op')
    for i in range(8):
        l = uid('sk')
        a(f's_bitcmp1_b32 s{sDN}, {i}')
        a(f's_cbranch_scc1 {l}')
        a(f's_add_u32 s{sT0}, s{sZ0}, {i*4096}')
        a(f'buffer_load_dwordx4 {vr(ZF+4*i,4)}, v{vL16}, s[{S_WS}:{S_WS+3}], s{sT0} offen{WT}')
        a.label(l)
    a('s_waitcnt vmcnt(0)')
    for i in range(8):
        t = (t0, t1)[i % 2]
        a(f'v_max3_u32 v{t}, v{ZF+4*i}, v{ZF+4*i+1}, v{ZF+4*i+2}')
        a(f'v_max_u32 v{t}, v{t}, v{ZF+4*i+3}')
        a(f'v_cmp_eq_u32 s[{86+2*i}:{87+2*i}], -1, v{t}')
    for i in range(8):
        a(f's_cmp_eq_u64 s[{86+2*i}:{87+2*i}], 0')
        a(f's_cselect_b32 s{sT0}, {1 << i}, 0')
        a(f's_or_b32 s{sDN}, s{sDN}, s{sT0}')
    a(f's_cmp_eq_u32 s{sDN}, 0xff')
    a('s_cbranch_scc1 L_f_opd')
    a(f's_sub_u32 s{sSPIN}, s{sSPIN}, 1')
    if opt.get('osleep', 0): a(f's_sleep {opt.get("osleep")}')
    if not FO: a('s_cbranch_scc0 L_f_op')
    a.label('L_f_opd')
    stamp(a, 9)
    for r in range(4):
        if r >= 2: a(f's_waitcnt lgkmcnt({8*(3-r)})')
        for m in dmm(WB[r % 2], ZF + 8*r): a(m)
        if r < 2:
            for x in wreads(16 + r, WB[r % 2]): a(x)
    for k in range(2, 8): a(f'ds_write_b128 v{vRW}, {vr(ACC+4*k,4)} offset:{(k-2)*1024}')
    a('s_waitcnt lgkmcnt(0)')
    a('s_barrier')
    for p in range(1, 4):
        a(f'ds_read_b128 {vr(ZF+8*p,4)}, v{R2[p-1]} offset:{(p-1)*2048}')
        a(f'ds_read_b128 {vr(ZF+8*p+4,4)}, v{R2[p-1]} offset:{(p-1)*2048+1024}')
    for p in range(1, 4):
        a(f's_waitcnt lgkmcnt({2*(3-p)})')
        for r in range(8): a(f'v_add_f32 v{ACC+r}, v{ACC+r}, v{ZF+8*p+r}')
    for r in range(4): a(f'v_cvt_pk_bf16_f32 v{XR+r}, v{ACC+2*r}, v{ACC+2*r+1}')
    a(f'buffer_store_dwordx4 {vr(XR,4)}, v{vXO}, s[{S_OUT}:{S_OUT+3}], 0 offen{opt.get("outfl", "")}')
    stamp(a, 10)
    if 'guprog' in opt.get('x', '') or 'gufine' in opt.get('x', ''): G.instr = True
    stamp_end(a)
    a('s_endpgm')

def build(opt=None, instr=False):
    opt = opt or {}
    G.instr = instr
    _uid[0] = 0
    HDR = open('cdna_kernels/%s.s.ref' % NAME).read().split('; Override launch')[0]
    a = Asm()
    K = NAME + '_kernel'
    a.l += ['.text', f'.globl {K}', '.p2align 8', f'.type {K},@function', f'{K}:']
    stamp_begin(a)
    a(f'''s_load_dwordx2 s[{S_X}:{S_X+1}], s[0:1], {KA_X}
          s_load_dwordx2 s[{S_W}:{S_W+1}], s[0:1], {KA_WQKV}
          s_load_dwordx2 s[{S_WS}:{S_WS+1}], s[0:1], {KA_WS}
          s_load_dwordx2 s[{S_DBG}:{S_DBG+1}], s[0:1], {KA_DBG}
          s_cmp_ge_u32 s2, 512
          s_cbranch_scc1 L_exit
          v_lshrrev_b32 v1, 6, v0
          v_readfirstlane_b32 s{sW}, v1
          v_and_b32 v0, 63, v0
          s_and_b32 s54, s2, 7
          s_bfe_u32 s55, s2, 0x50003
          s_lshr_b32 s{sRB}, s54, 1
          s_lshl_b32 s{sRB}, s{sRB}, 2
          s_and_b32 s{sCT}, s55, 3
          s_add_u32 s{sRB}, s{sRB}, s{sCT}
          s_lshr_b32 s55, s55, 2
          s_and_b32 s54, s54, 1
          s_lshl_b32 s{sCT}, s54, 3
          s_add_u32 s{sCT}, s{sCT}, s55
          v_lshlrev_b32 v18, 4, v0''')
    a(f'''s_bfe_u32 s{sT0}, s2, 0x10008
          s_xor_b32 s{sT0}, s{sT0}, 1
          s_lshl_b32 s{sT0}, s{sT0}, 3
          s_xor_b32 s{sT0}, s{sT0}, s{sCT}
          s_lshl_b32 s20, s{sRB}, 4
          s_add_u32 s20, s20, s{sT0}
          s_lshl_b32 s20, s20, 3
          s_add_u32 s20, s20, s{sW}
          s_lshl_b32 s20, s20, 10''')
    a(f'''v_min_u32 v1, 11, v0
          v_lshrrev_b32 v2, 2, v1
          v_and_b32 v1, 3, v1
          v_lshlrev_b32 v1, 7, v1
          v_lshl_add_u32 v1, v2, 10, v1
          s_and_b32 s{sT0}, s2, 0x1f8
          s_add_u32 s{sT0}, s{sT0}, s{sW}
          s_mul_i32 s{sT0}, s{sT0}, 3072
          s_lshl_b32 s{sT1}, s54, 9
          s_add_u32 s{sT0}, s{sT0}, s{sT1}''')
    srd(a, S_X, 2048*1024); srd(a, S_W, 512*3072); srd(a, S_WS, WS_SIZE); srd(a, S_DBG, 256)
    a('s_waitcnt lgkmcnt(0)')
    a(f's_xor_b32 s26, s{sW}, 7')
    a(f's_or_b32 s26, s2, s26')
    a('s_cbranch_scc1 L_a_nonw')
    a(f's_memrealtime s[26:27]')
    a('s_waitcnt lgkmcnt(0)')
    a(f's_or_b32 s26, s26, 1')
    a(f'v_mov_b32 v14, s26')
    a(f'v_mov_b32 v15, 0')
    a(f'buffer_store_dword v14, v15, s[{S_DBG}:{S_DBG+3}], 0 offen{WT}')
    a.label('L_a_nonw')
    P0 = opt.get('p0', 1)
    if P0 == 1:
        a(f'buffer_load_dwordx4 v[20:23], v18, s[{S_X}:{S_X+3}], s20 offen')
        a(f'buffer_load_dword v{vPF}, v1, s[{S_W}:{S_W+3}], s{sT0} offen')
        a('s_cmp_ge_u32 s2, 256')
        a('s_cbranch_scc1 L_role_f')
    else:
        a('s_cmp_lt_u32 s2, 256')
        a('s_cbranch_scc1 L_role_a')
        a(f'buffer_load_dwordx4 v[20:23], v18, s[{S_X}:{S_X+3}], s20 offen')
        if P0 == 0:
            a(f'buffer_load_dword v{vPF}, off, s[{S_W}:{S_W+3}], s{sT0}')
        else:
            a(f'buffer_load_dword v{vPF}, v1, s[{S_W}:{S_W+3}], s{sT0} offen')
            a(f's_sub_u32 s{sT0}, s{sT0}, {256*3072}')
            a(f'buffer_load_dword v{vPF}, v1, s[{S_W}:{S_W+3}], s{sT0} offen')
            a(f'v_min_u32 v1, 7, v0\n v_lshlrev_b32 v1, 7, v1\n s_xor_b32 s{sT0}, s20, 65536')
            a(f'buffer_load_dword v{vPF}, v1, s[{S_X}:{S_X+3}], s{sT0} offen')
        a('s_branch L_role_f')
        a.label('L_role_a')
    if opt.get('pf_code', 1):
        a('s_cmp_ge_u32 s2, 8')
        a('s_cbranch_scc1 L_nocode')
        a(f's_getpc_b64 s[{sT0}:{sT1}]')
        a.label('L_pc')
        a(f's_lshl_b32 s26, s{sW}, 13')
        a(f'v_lshl_add_u32 v1, v0, 7, s26')
        a(f'v_min_u32 v1, L_exit-L_pc, v1')
        a(f'global_load_dword v{vPF}, v1, s[{sT0}:{sT1}]')
        a.label('L_nocode')
    role_a(a, opt)
    a.label('L_role_f')
    a(f'''s_load_dwordx2 s[{S_G}:{S_G+1}], s[0:1], {KA_G}
          s_load_dwordx2 s[{S_U}:{S_U+1}], s[0:1], {KA_U}
          s_load_dwordx2 s[{S_WO}:{S_WO+1}], s[0:1], {KA_WO}
          s_load_dwordx2 s[{S_WD}:{S_WD+1}], s[0:1], {KA_D}
          s_load_dwordx2 s[{S_OUT}:{S_OUT+1}], s[0:1], {KA_OUT}''')
    role_f(a, opt)
    a.label('L_exit')
    a('s_endpgm')
    lines = fix_hazards(a.l)
    for p in check_branches(lines): print('BRANCH HAZARD', p, file=sys.stderr)
    out = HDR + '; @launch grid=(512,1,1) block=(512,1,1) lds=81920\n'
    out += '.amdgcn_target "amdgcn-amd-amdhsa--gfx950"\n' + '\n'.join(lines) + '\n'
    out += f'''.section .rodata,"a"
.p2align 6
.amdhsa_kernel {K}
  .amdhsa_next_free_vgpr 128
  .amdhsa_next_free_sgpr 102
  .amdhsa_accum_offset 128
  .amdhsa_group_segment_fixed_size 0
  .amdhsa_kernarg_size 80
  .amdhsa_user_sgpr_count 2
  .amdhsa_user_sgpr_kernarg_segment_ptr 1
  .amdhsa_system_sgpr_workgroup_id_x 1
.end_amdhsa_kernel
'''
    return out

if __name__ == '__main__':
    NP = dict(pf_gu=0, pf_xn=0, pf_wd=0, pf_h=0, pf_code=0, lv=(3, 6), p0=2, nlight=8, lall=1, lsleep=0)
    V = dict(a=NP, b=dict(NP, prio_gu=2), c=dict(NP, prio_gu=2, prio_f=2), d=dict(NP, prio_f=2, prio_gu=0))
    for n, o in V.items():
        open(f't_{n}.s', 'w').write(build(o, instr=True))
        open(f'u_{n}.s', 'w').write(build(o))
```

```python
import sys, struct, math
from dsl import *

NAME = 'parallel_sum__mha_block__glu_gated_reglu__prompt'
WS_K = 0
WS_V = 2 << 20
WS_XN = 4 << 20
WS_Z = 6 << 20
WS_FL = 15 << 20
FL_LN, FL_QKV, FL_H, FL_O = WS_FL, WS_FL + 32768, WS_FL + 65536, WS_FL + 98304
WS_ST = WS_FL + 131072
WS_SIZE = 16 << 20
KA_X, KA_WQKV, KA_WO, KA_G, KA_U, KA_D, KA_OUT, KA_DBG, KA_WS = 0, 8, 16, 32, 40, 48, 56, 64, 72
MFMA = 'v_mfma_f32_32x32x16_bf16'
MF16 = 'v_mfma_f32_16x16x32_bf16'
SMF = 'v_smfmac_f32_32x32x32_bf16'
WT = ' sc0 sc1'
SPIN_MAX = 40000

S_X, S_W, S_WS, S_U, S_OUT, S_DBG, S_WO, S_WD, S_G = 4, 8, 12, 28, 36, 40, 44, 48, 56
vPF = 19
sW, sRB, sCT, sCNT = 16, 17, 18, 19
sT0, sT1, sNON, sSPIN = 24, 25, 52, 53

def f32bits(x): return struct.unpack('<I', struct.pack('<f', x))[0]
def srd(a, d, size):
    a(f's_mov_b32 s{d+2}, {size}')
    a(f's_mov_b32 s{d+3}, 0x00020000')

class G:
    instr = False
def stamp(a, i):
    if G.instr:
        a(f's_memrealtime s[{64+2*i}:{65+2*i}]')
        a('s_waitcnt lgkmcnt(0)')
def stamp_begin(a):
    if G.instr:
        a('s_memrealtime s[64:65]')
        a('s_memtime s[60:61]')
        for i in range(1, 11): a(f's_mov_b64 s[{64+2*i}:{65+2*i}], 0')
        a('s_waitcnt lgkmcnt(0)')
def stamp_end(a):
    if G.instr:
        a('s_waitcnt vmcnt(0) lgkmcnt(0)')
        a('s_memrealtime s[86:87]')
        a('s_memtime s[62:63]')
        a('s_getreg_b32 s88, hwreg(HW_REG_HW_ID)')
        a('s_getreg_b32 s89, hwreg(HW_REG_XCC_ID)')
        a('s_waitcnt lgkmcnt(0)')
        a(f's_mov_b32 s{S_WS+2}, 0x10000000')
        a(f's_lshl_b32 s90, s2, 3')
        a(f's_add_u32 s90, s90, s{sW}')
        a(f's_lshl_b32 s90, s90, 6')
        a(f's_add_u32 s90, s90, {32<<20}')
        a('v_mov_b32 v1, 0')
        vals = ['s60', 's62', 's88', 's89'] + [f's{64+2*i}' for i in range(12)]
        for j in range(4):
            for r in range(4): a(f'v_mov_b32 v{4+r}, {vals[4*j+r]}')
            a(f'buffer_store_dwordx4 v[4:7], v1, s[{S_WS}:{S_WS+3}], s90 offen offset:{16*j}')
            a('s_nop 1')

_uid = [0]
def uid(p):
    _uid[0] += 1
    return f'L_{p}{_uid[0]}'

def nonce_issue(a, vN, w0=False):
    if w0:
        l = uid('ni')
        a(f's_cmp_lg_u32 s{sW}, 0\n s_cbranch_scc1 {l}')
    a(f'buffer_load_dword v{vN}, off, s[{S_DBG}:{S_DBG+3}], 0{WT}')
    if w0: a.label(l)
def nonce_finish(a, vN):
    l, d = uid('np'), uid('nd')
    a(f's_mov_b32 s{sSPIN}, {SPIN_MAX}')
    a.label(l)
    a(f'v_readfirstlane_b32 s{sNON}, v{vN}')
    a(f's_cmp_lg_u32 s{sNON}, 0')
    a(f's_cbranch_scc1 {d}')
    a(f's_sub_u32 s{sSPIN}, s{sSPIN}, 1')
    a(f's_cbranch_scc1 {d}')
    a('s_sleep 2')
    nonce_issue(a, vN)
    a('s_waitcnt vmcnt(0)')
    a(f's_branch {l}')
    a.label(d)
def flag_set(a, base, sG, sP, vA, vB):
    a(f's_lshl_b32 s{sT0}, s{sG}, 11')
    a(f's_lshl_b32 s{sT1}, s{sP}, 7')
    a(f's_add_u32 s{sT0}, s{sT0}, s{sT1}')
    a(f's_add_u32 s{sT0}, s{sT0}, {base}')
    a(f'v_mov_b32 v{vA}, s{sNON}')
    a(f'v_mov_b32 v{vB}, 0')
    a('s_mov_b64 exec, 1')
    a(f'buffer_store_dword v{vA}, v{vB}, s[{S_WS}:{S_WS+3}], s{sT0} offen{WT}')
    a('s_mov_b64 exec, -1')
def flag_wait_v(a, base, sG, n, vA, vB, sleep=1):
    l, d = uid('fw'), uid('fd')
    a(f's_lshl_b32 s{sT0}, s{sG}, 11')
    a(f's_add_u32 s{sT0}, s{sT0}, {base}')
    a(f'v_min_u32 v{vB}, {n-1}, v0')
    a(f'v_lshlrev_b32 v{vB}, 7, v{vB}')
    a(f's_mov_b32 s{sSPIN}, {SPIN_MAX}')
    a.label(l)
    a(f'buffer_load_dword v{vA}, v{vB}, s[{S_WS}:{S_WS+3}], s{sT0} offen{WT}')
    a('s_waitcnt vmcnt(0)')
    a(f'v_cmp_ne_u32 vcc, s{sNON}, v{vA}')
    a('s_nop 4')
    a(f's_cbranch_vccz {d}')
    a(f's_sub_u32 s{sSPIN}, s{sSPIN}, 1')
    a(f's_cbranch_scc1 {d}')
    a(f's_sleep {sleep}')
    a(f's_branch {l}')
    a.label(d)
def flag_wait_s(a, base, sG, n, sleep=1, gsh=11, stride=128, sP=None):
    l, d = uid('fw'), uid('fd')
    a(f's_lshl_b32 s{sT0}, s{sG}, {gsh}')
    if sP is not None:
        a(f's_lshl_b32 s{sT1}, s{sP}, 7')
        a(f's_add_u32 s{sT0}, s{sT0}, s{sT1}')
    a(f's_add_u32 s{sT0}, s{sT0}, {base}')
    a(f's_add_u32 s{sT0}, s{sT0}, s{S_WS}')
    a(f's_addc_u32 s{sT1}, s{S_WS+1}, 0')
    a(f's_mov_b32 s{sSPIN}, {SPIN_MAX}')
    a.label(l)
    for i in range(n): a(f's_load_dword s{86+i}, s[{sT0}:{sT1}], {i*stride} glc')
    a('s_waitcnt lgkmcnt(0)')
    a(f's_xor_b32 s86, s86, s{sNON}')
    for i in range(1, n):
        a(f's_xor_b32 s{86+i}, s{86+i}, s{sNON}')
        a(f's_or_b32 s86, s86, s{86+i}')
    a(f's_cbranch_scc0 {d}')
    a(f's_sub_u32 s{sSPIN}, s{sSPIN}, 1')
    a(f's_cbranch_scc1 {d}')
    a(f's_sleep {sleep}')
    a(f's_branch {l}')
    a.label(d)

def x_dma_voff(a, vD, t):
    a(f'''v_lshrrev_b32 v1, 2, v0
          s_lshl_b32 s{sT0}, s{sW}, 4
          v_add_u32 v1, s{sT0}, v1
          v_lshlrev_b32 v1, 10, v1
          v_lshrrev_b32 v{t}, 4, v0
          v_xor_b32 v{t}, v{t}, v0
          v_and_b32 v{t}, 3, v{t}
          v_lshl_add_u32 v{vD}, v{t}, 4, v1''')
def x_read_base(a, vB0, vB1, t, sBLK):
    a(f'''v_and_b32 v1, 31, v0
          v_lshlrev_b32 v1, 6, v1
          v_add_u32 v1, s{sBLK}, v1
          v_bfe_u32 v{t}, v0, 2, 2
          v_lshrrev_b32 v{t+1}, 5, v0
          v_xor_b32 v{t}, v{t}, v{t+1}
          v_lshl_add_u32 v{vB0}, v{t}, 4, v1
          v_xor_b32 v{vB1}, 32, v{vB0}''')
def w_lane_part(a, t, UP):
    a(f'''v_bfe_u32 v1, v0, 2, 2
          v_lshlrev_b32 v1, 6, v1
          v_bfe_u32 v{t}, v0, 4, 1
          v_lshl_add_u32 v1, v{t}, 5, v1
          v_and_b32 v{t}, 3, v0
          v_lshl_add_u32 v1, v{t}, 3, v1
          v_lshrrev_b32 v{t}, 5, v0
          v_lshl_add_u32 v1, v{t}, {(2*UP).bit_length()-1}, v1''')

def role_a(a, opt):
    SLOT, NS = 14336, 16
    XS, WB0, WS_ = 16384, 49152, 6144
    STAT = 79872
    ONES = 65536
    X = opt.get('x', '')
    PRIO = opt.get('prio', True); LOWT = opt.get('lowtile', 4); PB = opt.get('pbase', 1); LV = opt.get('lv')
    sXO, sWO = 20, 21
    sDX, sDW, sMB = 33, 34, 35
    sZO, sOWN, sHB = 28, 29, 30
    vDX, vDW = 2, 3
    vX0, vX1, vW0, vW1, vWC, vCA = 4, 5, 6, 7, 8, 9
    vX2, vX3, vDX1 = 127, 125, 126
    t0, t1 = 10, 11
    GR, vNO = 12, 14
    vG, vLS, vCS, vR = 16, 17, 18, 15
    FS = (20, 100)
    RS, SEL, ACS, ACS2, CSF, CSF2 = 48, 52, 56, 60, 96, 60
    ACC = 64
    vL16, vKB, vVB, vMK, vIX, vKA, vVA = 44, 45, 46, 47, 124, 125, 126
    Q, KF = 12, 16
    VF = (20, 28)
    PK = 36
    S = (48, 64)
    O = 80
    C = 96
    if 'fonly' in X.split(): a('s_branch L_a_end')
    a(f's_setprio {opt.get("prio_qkv", 3)}')
    a(f'''s_and_b32 s{sMB}, s{sW}, 3
          v_lshrrev_b32 v1, 3, v0
          s_lshl_b32 s{sT0}, s{sW}, 4
          v_add_u32 v1, s{sT0}, v1
          v_lshlrev_b32 v1, 10, v1
          v_lshrrev_b32 v{t0}, 4, v0
          v_xor_b32 v{t0}, v{t0}, v0
          v_and_b32 v{t0}, 7, v{t0}
          v_lshl_add_u32 v{vDX}, v{t0}, 4, v1
          v_xor_b32 v{vDX1}, 64, v{vDX}
          v_add_u32 v{vDX1}, 8192, v{vDX1}
          s_and_b32 s{sT0}, s{sMB}, 1
          s_add_u32 s{sT1}, s{sT0}, 4
          s_lshr_b32 s31, s{sMB}, 1
          s_cmp_ge_u32 s{sW}, 4
          s_cselect_b32 s{sDW}, s{sMB}, s{sT1}
          s_cselect_b32 s31, 0, s31
          s_lshl_b32 s{sT0}, s{sT0}, 4
          s_lshl_b32 s{sT1}, s31, 5
          s_add_u32 s{sT0}, s{sT0}, s{sT1}
          v_lshrrev_b32 v1, 2, v0
          v_add_u32 v1, s{sT0}, v1
          v_mul_u32_u24 v{t0}, 3072, v1
          v_and_b32 v1, 3, v0
          v_lshl_add_u32 v{t0}, v1, 4, v{t0}
          s_lshr_b32 s{sT0}, s{sDW}, 1
          s_lshl_b32 s{sT0}, s{sT0}, 4
          s_add_u32 s{sT0}, s{sT0}, s{sCT}
          s_lshl_b32 s{sT0}, s{sT0}, 6
          v_add_u32 v{vDW}, s{sT0}, v{t0}
          s_lshl_b32 s{sDW}, s{sDW}, 10
          s_lshl_b32 s{sDX}, s{sW}, 11
          s_lshl_b32 s{sXO}, s{sRB}, 17
          s_mov_b32 s{sWO}, 0''')
    ROT = opt.get('rot', 1)
    if ROT:
        a(f'''s_lshl_b32 s{sT0}, s{sRB}, 1
              s_add_u32 s{sT0}, s{sT0}, s{sCT}
              s_and_b32 s{sT0}, s{sT0}, 7
              s_mul_i32 s{sWO}, s{sT0}, {64*3072}
              s_lshl_b32 s{sT0}, s{sT0}, 7
              s_add_u32 s{sXO}, s{sXO}, s{sT0}''')
    WW = f'\n s_cmp_eq_u32 s{sWO}, {512*3072}\n s_cselect_b32 s{sWO}, 0, s{sWO}' if ROT else ''
    XW = f'\n s_bitset0_b32 s{sXO}, 10' if ROT else ''
    def dma_w(st, kind):
        A, B = WB0 + (st % 5)*WS_, WB0 + ((st+1) % 5)*WS_
        if kind == 'v':
            return [f's_add_u32 m0, s{sDW}, {A}\n s_add_u32 s22, s{sWO}, {32*3072}\n buffer_load_dwordx4 v{vDW}, s[{S_W}:{S_W+3}], s{sWO} offen lds',
                    f's_add_u32 m0, s{sDW}, {B}\n s_add_u32 s{sWO}, s{sWO}, {64*3072}\n buffer_load_dwordx4 v{vDW}, s[{S_W}:{S_W+3}], s22 offen lds' + WW]
        return [f's_mul_i32 s22, s31, {B-A}\n s_add_u32 s22, s22, {A}\n s_add_u32 m0, s{sDW}, s22\n s_nop 0\n buffer_load_dwordx4 v{vDW}, s[{S_W}:{S_W+3}], s{sWO} offen lds\n s_add_u32 s{sWO}, s{sWO}, {64*3072}' + WW]
    def dma_x(sx):
        return [f's_add_u32 m0, s{sDX}, {(sx%3)*XS}\n s_nop 0\n buffer_load_dwordx4 v{vDX}, s[{S_X}:{S_X+3}], s{sXO} offen lds',
                f's_add_u32 m0, s{sDX}, {(sx%3)*XS + 1024}\n s_nop 0\n buffer_load_dwordx4 v{vDX1}, s[{S_X}:{S_X+3}], s{sXO} offen lds\n s_add_u32 s{sXO}, s{sXO}, 128' + XW]
    def first_loads(kind):
        for grp in (dma_w(0, kind), dma_x(0), dma_w(2, kind), dma_x(1), dma_x(2)):
            for x in grp: a(x)
    a(f's_cmp_ge_u32 s{sW}, 4')
    a('s_cbranch_scc1 L_a_fl_v')
    first_loads('qk')
    a('s_branch L_a_fl_d')
    a.label('L_a_fl_v')
    first_loads('v')
    a.label('L_a_fl_d')
    stamp(a, 1)
    a(f'''s_lshl_b32 s{sT1}, s{sMB}, 12
          v_and_b32 v1, 31, v0
          v_lshlrev_b32 v1, 7, v1
          v_add_u32 v1, s{sT1}, v1
          v_bfe_u32 v{t0}, v0, 1, 3
          v_lshrrev_b32 v{t1}, 5, v0
          v_xor_b32 v{t0}, v{t0}, v{t1}
          v_lshl_add_u32 v{vX0}, v{t0}, 4, v1''')
    w_lane_part(a, t0, 256)
    a(f'v_add_u32 v{vW0}, {WB0}, v1')
    a(f'v_lshlrev_b32 v{vL16}, 4, v0')
    a(f'''s_lshl_b32 s{sZO}, s{sRB}, 2
          s_add_u32 s{sZO}, s{sZO}, s{sMB}
          s_lshl_b32 s{sOWN}, s{sCT}, 7
          s_add_u32 s{sOWN}, s{sOWN}, s{sZO}
          s_lshl_b32 s{sOWN}, s{sOWN}, 10
          s_mul_i32 s{sZO}, s{sZO}, 144
          s_lshl_b32 s{sT0}, s{sCT}, 1
          s_add_u32 s{sZO}, s{sZO}, s{sT0}
          s_lshr_b32 s{sHB}, s{sW}, 2
          s_add_u32 s{sZO}, s{sZO}, s{sHB}
          s_lshl_b32 s{sZO}, s{sZO}, 10
          s_add_u32 s{sZO}, s{sZO}, {WS_Z}
          s_lshl_b32 s{sHB}, s{sHB}, 14''')
    a(f'''v_mov_b32 v{t1}, 0x3f803f80
          v_mov_b32 v{vIX}, 0xdddddddd
          v_and_b32 v{t0}, 15, v0
          v_bfe_u32 v{vMK}, v0, 4, 1
          v_cmp_eq_u32 vcc, v{t0}, v{vMK}
          v_cndmask_b32 v{SEL}, 0, v{t1}, vcc''')
    for r in range(1, 4): a(f'v_mov_b32 v{SEL+r}, v{SEL}')
    a(f'''v_add_u32 v{vKB}, s{sHB}, v{vL16}
          v_lshrrev_b32 v1, 5, v0
          v_lshlrev_b32 v1, 8, v1
          v_lshl_add_u32 v{vG}, v{t0}, 4, v1
          s_add_u32 s{sT0}, s{sHB}, 8192
          v_add_u32 v1, s{sT0}, v1
          v_cmp_eq_u32 vcc, 0, v{vMK}
          v_mov_b32 v{t1}, {ONES}
          v_cndmask_b32 v1, v{t1}, v1, vcc
          v_lshl_add_u32 v{vVB}, v{t0}, 4, v1''')
    a(f'''v_lshrrev_b32 v1, 5, v0
          v_mul_u32_u24 v1, 384, v1
          v_and_b32 v{t1}, 31, v0
          v_lshl_add_u32 v1, v{t1}, 2, v1
          v_add_u32 v{vCS}, {STAT+512}, v1''')
    for r in [RS+2, RS+3, CSF+2, CSF+3] + list(range(ACS, ACS+8)) + list(range(ACC, ACC+32)):
        a(f'v_mov_b32 v{r}, 0')

    def qkv_path(kind):
        nw = 2 if kind == 'qk' else 1
        a(f's_lshl_b32 s{sT0}, s{sMB}, 10')
        if kind == 'qk':
            a(f'''v_lshrrev_b32 v{vG}, 1, v{vL16}
                  v_xor_b32 v{vG}, v{vG}, v{vL16}
                  v_and_b32 v{vG}, 64, v{vG}
                  v_mul_u32_u24 v{vG}, 3, v{vG}
                  v_xor_b32 v{vG}, v{vG}, v{vL16}
                  v_add_u32 v{vLS}, s{sT0}, v{vG}
                  v_add_u32 v{vCA}, s{sT0}, v{vL16}''')
        else:
            a(f'''v_lshl_add_u32 v{vLS}, v{vMK}, 14, v{vG}
                  v_add_u32 v{vLS}, s{sT0}, v{vLS}
                  v_lshl_add_u32 v{vG}, v{vMK}, 16, v{vG}
                  s_and_b32 s{sT0}, s{sMB}, 2
                  s_lshl_b32 s{sT0}, s{sT0}, 4
                  v_xor_b32 v{vX0}, s{sT0}, v{vX0}
                  s_lshl_b32 s{sT0}, s{sT0}, 5
                  v_add_u32 v{vW0}, s{sT0}, v{vW0}
                  v_xor_b32 v{vW1}, 1024, v{vW0}
                  s_and_b32 s{sT1}, s{sMB}, 1
                  s_lshl_b32 s{sT0}, s{sT1}, 11
                  v_add_u32 v{vWC}, s{sT0}, v{vW0}
                  s_lshr_b32 s{sT0}, s{sMB}, 1
                  s_mul_i32 s{sT0}, s{sT0}, 384
                  s_add_u32 s{sT0}, s{sT0}, {STAT+512}
                  v_lshl_add_u32 v{vCA}, v{t0}, 2, s{sT0}
                  s_lshl_b32 s{sT1}, s{sT1}, 7
                  v_add_u32 v19, s{sT1}, v{vCA}''')
        a(f'v_xor_b32 v{vMK}, 1, v{vMK}')
        a(f'v_xor_b32 v{vX1}, 32, v{vX0}\n v_xor_b32 v{vX2}, 64, v{vX0}\n v_xor_b32 v{vX3}, 96, v{vX0}')
        def reads(st):
            F = FS[st % 2]; o = (st % 5) * WS_
            r = []
            for ph in range(2):
                r.append(f'ds_read_b128 {vr(F+4*ph,4)}, v{(vX0,vX1,vX2,vX3)[2*(st%2)+ph]} offset:{((st//2)%3)*XS}')
                for j in range(nw):
                    for t in range(2):
                        if kind == 'qk': ad, off = vW0, j*2048 + ph*1024
                        else: ad, off = (vW0, vW1)[ph], 4096
                        r.append(f'ds_read_b64_tr_b16 {vr(F+8+8*j+4*ph+2*t,2)}, v{ad} offset:{o+off+t*256}')
            if kind == 'v':
                for t in range(2): r.append(f'ds_read_b64_tr_b16 {vr(F+16+2*t,2)}, v{vWC} offset:{o+t*256}')
            return r
        def mms(st):
            F = FS[st % 2]
            big = []
            for ph in range(2):
                for j in range(nw):
                    d = ACC + 16*j
                    xa, wa = vr(F+4*ph,4), vr(F+8+8*j+4*ph,4)
                    big.append(f'{MFMA} {vr(d,16)}, {xa}, {wa}, {vr(d,16)}' if kind == 'v' else f'{MFMA} {vr(d,16)}, {wa}, {xa}, {vr(d,16)}')
            small = []
            if kind == 'v':
                small = [f'{MF16} {vr(ACS2,4)}, {vr(SEL,4)}, {vr(F+16,4)}, {vr(ACS2,4)}',
                         f'{MF16} {vr(ACS,4)}, {vr(SEL,4)}, {vr(F+8,4)}, {vr(ACS,4)}']
            return big, small
        nwp = 1 if kind == 'qk' else 2
        vq = ['w0']*nwp + ['x0']*2 + ['w1']*nwp + ['x1']*2 + ['x2']*2
        def vneed(tags):
            last = max((k for k, t in enumerate(vq) if t in tags), default=-1)
            n = len(vq) - 1 - last
            del vq[:last+1]
            return n
        def stage(st):
            if st % 2 == 0: a(f's_waitcnt vmcnt({vneed({f"x{st//2}", f"w{st//2}"})}) lgkmcnt(0)')
            else: a('s_waitcnt lgkmcnt(0)')
            if st % 2 == 0 or st <= 11: a('s_barrier')
            rd = reads(st)
            dm = []
            if st % 2 == 1 and st <= 11:
                dm = dma_w(st + 3, kind); vq.extend([f'w{(st+3)//2}']*nwp)
            if st % 2 == 0 and 2 <= st <= 10:
                dm = dma_x(st//2 + 2); vq.extend([f'x{st//2+2}']*2)
            if 'qnord' in X: rd = []
            if 'qnodma' in X: dm = []
            other = (dm + rd) if opt.get('dmafirst', 0) else (rd + dm)
            if st == 0 or 'qnomm' in X:
                for x in other: a(x)
                return
            big, small = mms(st - 1)
            per = opt.get('qper', 4)
            for m in big + small:
                a(m)
                for x in other[:per]: a(x)
                other = other[per:]
            for x in other: a(x)
        stage(0)
        stamp(a, 8)
        for st in range(1, 13):
            stage(st)
            if 'qprog' in X and st % 4 == 0: a(f's_memrealtime s[{64+2*(3+st//4)}:{65+2*(3+st//4)}]')
            if 'qprog' in X and st == 4: a('s_memtime s[60:61]')
            if 'qprog' in X and st == 12: a('s_memtime s[84:85]')
        vq.extend(['n', 'g', 'p', 'p'])
        a(f'''v_and_b32 v{t1}, 31, v0
              v_lshlrev_b32 v{t1}, 3, v{t1}
              s_lshl_b32 s{sWO}, s{sRB}, 2
              s_add_u32 s{sWO}, s{sWO}, s{sMB}
              s_lshl_b32 s{sWO}, s{sWO}, 8
              s_add_u32 s{sWO}, s{sWO}, {WS_ST}''')
        def gload():
            nonce_issue(a, vNO)
            a(f'buffer_load_dwordx2 {vr(GR,2)}, v{t1}, s[{S_WS}:{S_WS+3}], s{sWO} offen{WT}')
        gload()
        a(f'v_mov_b32 v2, -1\n v_mov_b32 v3, -1\n v_lshlrev_b32 v1, 3, v0')
        a(f'buffer_store_dwordx2 v[2:3], v1, s[{S_WS}:{S_WS+3}], s{sZO} offen{WT}')
        a(f'buffer_store_dwordx2 v[2:3], v1, s[{S_WS}:{S_WS+3}], s{sZO} offen offset:512{WT}')
        stage(13); stage(14); stage(15)
        if 'qprog' in X: a(f's_memrealtime s[78:79]')
        l, d = uid('gl'), uid('gd')
        a(f's_mov_b32 s{sSPIN}, {SPIN_MAX}')
        a('s_waitcnt vmcnt(2)')
        a.label(l)
        a(f'v_readfirstlane_b32 s{sNON}, v{vNO}')
        a(f'v_cmp_ne_u32 vcc, v{vNO}, v{GR+1}')
        a(f's_cmp_eq_u32 s{sNON}, 0')
        a(f's_cselect_b32 s{sT0}, 1, 0')
        a(f's_or_b32 s{sT0}, s{sT0}, vcc_hi')
        a(f's_or_b32 s{sT0}, s{sT0}, vcc_lo')
        a(f's_cbranch_scc0 {d}')
        a(f's_sub_u32 s{sSPIN}, s{sSPIN}, 1')
        a(f's_cbranch_scc1 {d}')
        a('s_sleep 2')
        gload()
        a('s_waitcnt vmcnt(0)')
        a(f's_branch {l}')
        a.label(d)
        a(f'''v_and_b32 v{vR}, 0xffff0000, v{GR}
              v_rcp_f32 v{vR}, v{vR}
              v_and_b32 v{RS+1}, 0xffff, v{GR}
              v_xor_b32 v{RS+1}, 0x8000, v{RS+1}
              v_lshl_or_b32 v{RS}, v{RS+1}, 16, v{RS+1}''')
        if kind == 'v':
            a(f'''s_lshl_b32 s{sT0}, s{sMB}, 7
                  s_add_u32 s{sT0}, s{sT0}, {STAT}
                  v_lshrrev_b32 v{t1}, 1, v{t1}
                  v_add_u32 v{t1}, s{sT0}, v{t1}
                  ds_write_b32 v{t1}, v{vR}
                  v_lshrrev_b32 v{t1}, 5, v0
                  v_lshl_add_u32 v{t1}, v{t1}, 4, s{sT0}''')
        a('s_waitcnt lgkmcnt(0)')
        big, small = mms(15)
        if kind == 'v':
            for m in small: a(m)
            for i in range(4): a(f'ds_read_b128 {vr(ACC+16+4*i,4)}, v{t1} offset:{32*i}')
            a('s_mov_b64 exec, 0xffff')
            a(f'ds_write_b32 v19, v{ACS2}')
            a(f'ds_write_b32 v19, v{ACS2+1} offset:64')
            a(f'ds_write_b32 v{vCA}, v{ACS} offset:256')
            a(f'ds_write_b32 v{vCA}, v{ACS+1} offset:320')
            a('s_mov_b64 exec, -1')
            for m in big: a(m)
        else:
            for m in (big[1], big[3], big[0], big[2]): a(m)
        stamp(a, 2)
        a('s_waitcnt lgkmcnt(0)')
        a('s_barrier')
        def split(Fg, c):
            a(f'''v_and_b32 v{t0}, 0xffff0000, v{c}
                  v_sub_f32 v{t0}, v{c}, v{t0}
                  v_perm_b32 v{Fg}, v{t0}, v{c}, s{sT0}
                  v_and_b32 v{c}, 0xffff0000, v{t0}
                  v_sub_f32 v{t0}, v{t0}, v{c}
                  v_lshrrev_b32 v{Fg+1}, 16, v{t0}''')
        PKK = 20
        a(f's_mov_b32 s{sT0}, 0x07060302')
        if kind == 'qk':
            a(f'ds_read_b32 v4, v{vCS} offset:128')
            a(f'ds_read_b32 v5, v{vCS}')
            a('s_waitcnt lgkmcnt(1)')
            split(CSF, 4)
            a(f'{MFMA} {vr(ACC+16,16)}, {vr(CSF,4)}, {vr(RS,4)}, {vr(ACC+16,16)}')
            a('s_waitcnt lgkmcnt(0)')
            split(CSF2, 5)
            a(f'{MFMA} {vr(ACC,16)}, {vr(CSF2,4)}, {vr(RS,4)}, {vr(ACC,16)}')
            a(f'v_mul_f32 v4, {f32bits(0.25 * math.log2(math.e)):#x}, v{vR}')
            a(f'v_mov_b32 v5, v{vR}')
            for j in (1, 0):
                for hh in range(2):
                    o = (PKK + 4*hh) if j == 1 else (Q if hh == 0 else PKK + 8)
                    for r in range(8):
                        d = ACC + 16*j + 8*hh + r
                        a(f'v_mul_f32 v{d}, v{4+j}, v{d}')
                    for r in range(4):
                        d = ACC + 16*j + 8*hh + 2*r
                        a(f'v_cvt_pk_bf16_f32 v{o+r}, v{d}, v{d+1}')
                    if j == 1:
                        a(f's_add_u32 s{sT1}, s{sOWN}, {WS_K + hh*65536}')
                        a(f'buffer_store_dwordx4 {vr(o,4)}, v{vG}, s[{S_WS}:{S_WS+3}], s{sT1} offen{WT}')
                        a(f'ds_write_b128 v{vLS}, {vr(o,4)} offset:{32768 + hh*16384}')
                    elif hh == 1:
                        a(f'ds_write_b128 v{vCA}, {vr(o,4)}')
        else:
            a(f'ds_read_b32 v4, v{vCS} offset:256')
            a(f's_add_u32 s{sT1}, s{sOWN}, {WS_V}')
            a('s_waitcnt lgkmcnt(0)')
            split(CSF, 4)
            a(f'{MFMA} {vr(ACC,16)}, {vr(RS,4)}, {vr(CSF,4)}, {vr(ACC,16)}')
            for hh in range(2):
                o = PKK + 4*hh
                for r in range(8):
                    d = ACC + 8*hh + r
                    a(f'v_mul_f32 v{d}, v{d+16}, v{d}')
                for r in range(4):
                    d = ACC + 8*hh + 2*r
                    a(f'v_cvt_pk_bf16_f32 v{o+r}, v{d}, v{d+1}')
                a(f'buffer_store_dwordx4 {vr(o,4)}, v{vG}, s[{S_WS}:{S_WS+3}], s{sT1} offen offset:{hh*512}{WT}')
                a(f'ds_write_b128 v{vLS}, {vr(o,4)} offset:{32768+8192+hh*512}')
    a(f's_cmp_ge_u32 s{sW}, 4')
    a('s_cbranch_scc1 L_a_vloop')
    qkv_path('qk')
    a('s_branch L_a_epi_done')
    a.label('L_a_vloop')
    qkv_path('v')
    a.label('L_a_epi_done')
    stamp(a, 9)
    sC, sKT, sDSA, sRSK, sMK = 19, 21, 22, 23, 26
    a(f'''v_and_b32 v{t0}, 11, v0
          v_cmp_eq_u32 vcc, 0, v{t0}
          v_mov_b32 v{t1}, 0x3f803f80
          v_cndmask_b32 v{PK}, 0, v{t1}, vcc
          s_lshl_b32 s{sT0}, s{sW}, 10
          s_add_u32 s{sT0}, s{sT0}, {ONES}
          v_add_u32 v{t0}, s{sT0}, v{vL16}''')
    for r in range(1, 4): a(f'v_mov_b32 v{PK+r}, v{PK}')
    a(f'ds_write_b128 v{t0}, {vr(PK,4)}')
    a(f'v_add_u32 v{vKA}, 32768, v{vKB}')
    a(f'v_lshl_add_u32 v{vVA}, v{vMK}, 15, v{vVB}')
    for r in range(O, O + 16): a(f'v_mov_b32 v{r}, 0')
    a('s_waitcnt vmcnt(0) lgkmcnt(0)')
    a('s_barrier')
    a(f's_cmp_lg_u32 s{sW}, 0')
    a('s_cbranch_scc1 L_a_nopub')
    flag_set(a, FL_QKV, sCT, sRB, t0, t1)
    a.label('L_a_nopub')
    stamp(a, 3)
    if 'estop' in X: a('s_branch L_a_end')
    a(f's_setprio {PB+1}')
    a(f'ds_read_b128 {vr(KF,4)}, v{vKA}')
    a(f's_cmp_lt_u32 s{sW}, 4')
    a('s_cbranch_scc1 L_a_haveq')
    a(f's_lshl_b32 s{sT0}, s{sMB}, 10')
    a(f'v_add_u32 v{t0}, s{sT0}, v{vL16}')
    a(f'ds_read_b128 {vr(Q,4)}, v{t0}')
    a.label('L_a_haveq')
    a('s_waitcnt lgkmcnt(0)')
    a(f'ds_read_b128 {vr(VF[0],4)}, v{vVA}')
    a(f'ds_read_b128 {vr(VF[0]+4,4)}, v{vVA} offset:512')
    a(f'{MFMA} {vr(S[1],16)}, {vr(KF,4)}, {vr(Q,4)}, 0')
    def setC(m):
        a(f'v_mov_b32 v{t1}, v{m}')
        a(f'v_permlane32_swap_b32 v{t1}, v{m}')
        a(f'v_max_f32 v{m}, v{m}, v{t1}')
        for r in range(16): a(f'v_sub_f32 v{C+r}, 0, v{m}')
    a(f'v_max3_f32 v{t0}, v{S[1]}, v{S[1]+1}, v{S[1]+2}')
    for r in range(3, 15, 2): a(f'v_max3_f32 v{t0}, v{t0}, v{S[1]+r}, v{S[1]+r+1}')
    a(f'v_max_f32 v{t0}, v{t0}, v{S[1]+15}')
    setC(t0)
    a(f'{MFMA} {vr(S[0],16)}, {vr(KF,4)}, {vr(Q,4)}, {vr(C,16)}')
    a(f'ds_read_b128 {vr(KF,4)}, v{vKA} offset:1024')

    def tile(j, koff, voff, qk=True, p1=True, h1=None, h2=None, h3=None, h4=None):
        cur, nxt = S[j % 2], S[(j + 1) % 2]
        vc, vn = VF[j % 2], VF[(j + 1) % 2]
        e = lambda r: a(f'v_exp_f32 v{cur+r}, v{cur+r}')
        e(0); e(1)
        if p1: a(f'{SMF} {vr(O,16)}, {vr(vn+4,4)}, {vr(nxt+8,8)}, v{vIX}')
        if 'anowait' not in X: a('s_waitcnt lgkmcnt(0)')
        if h1: h1()
        e(2); e(3); e(4)
        if h2: h2()
        e(5)
        if qk: a(f'{MFMA} {vr(nxt,16)}, {vr(KF,4)}, {vr(Q,4)}, {vr(C,16)}')
        if h3: h3()
        if koff is not None: a(f'ds_read_b128 {vr(KF,4)}, v{vKA} offset:{koff}')
        if voff is not None:
            a(f'ds_read_b128 {vr(vn,4)}, v{vVA} offset:{voff}')
            a(f'ds_read_b128 {vr(vn+4,4)}, v{vVA} offset:{voff+512}')
        e(6); e(7); e(8); e(9); e(10)
        a(f'{SMF} {vr(O,16)}, {vr(vc,4)}, {vr(cur,8)}, v{vIX}')
        if h4: h4()
        e(11); e(12); e(13); e(14); e(15)
    for j in range(4):
        tile(j, (j+2)*1024 if j < 2 else None, (j+1)*1024 if j < 3 else None, qk=(j < 3), p1=(j > 0))
    stamp(a, 4)
    if 'ostop' in X: a('s_branch L_a_end')
    a(f's_cmp_lg_u32 s{sW}, 0')
    a('s_cbranch_scc1 L_a_nowait')
    if opt.get('apoll', 'v') == 'v': flag_wait_v(a, FL_QKV, sCT, 16, t0, t1)
    else: flag_wait_s(a, FL_QKV, sCT, 16)
    a.label('L_a_nowait')
    sGB = 20
    a(f'''s_lshl_b32 s{sGB}, s{sCT}, 1
          s_lshr_b32 s{sT0}, s{sW}, 2
          s_add_u32 s{sGB}, s{sGB}, s{sT0}
          s_lshl_b32 s{sGB}, s{sGB}, 16
          s_lshl_b32 s{sKT}, s{sRB}, 12''')
    a('s_barrier')
    stamp(a, 5)
    def gaddr(dst, delta_s, delta_c, base):
        a(f's_add_u32 s{dst}, s{sKT}, {delta_c}')
        if delta_s is not None: a(f's_add_u32 s{dst}, s{dst}, s{delta_s}')
        a(f's_and_b32 s{dst}, s{dst}, 0xffff')
        a(f's_add_u32 s{dst}, s{dst}, s{sGB}')
        if base: a(f's_add_u32 s{dst}, s{dst}, {base}')
    sM1, sM2 = 34, 32
    a(f's_lshl_b32 s{sM1}, s{sMB}, 10\n s_lshl_b32 s{sM2}, s{sMB}, 11')
    gaddr(sT0, None, 4096, WS_K)
    a(f'buffer_load_dwordx4 {vr(KF,4)}, v{vL16}, s[{S_WS}:{S_WS+3}], s{sT0} offen')
    a(f's_add_u32 s{sDSA}, s{sHB}, s{sM1}')
    gaddr(sT0, sM1, 5120, WS_K)
    a(f's_add_u32 m0, s{sDSA}, 4096')
    a(f'buffer_load_dwordx4 v{vL16}, s[{S_WS}:{S_WS+3}], s{sT0} offen lds')
    gaddr(sT0, sM1, 4096, WS_V)
    a(f's_add_u32 m0, s{sDSA}, {8192+4096}')
    a(f'buffer_load_dwordx4 v{vL16}, s[{S_WS}:{S_WS+3}], s{sT0} offen lds')
    a(f's_add_u32 s{sDSA}, s{sHB}, s{sM2}')
    a(f's_add_u32 s{sKT}, s{sKT}, s{sM2}')
    def dma_iter():
        a(f's_xor_b32 s{sDSA}, s{sDSA}, 32768')
        a(f's_add_u32 s{sKT}, s{sKT}, 8192')
        for i in range(2):
            gaddr(sT0, None, 1024 + i*1024, WS_K)
            a(f's_add_u32 m0, s{sDSA}, {i*1024}')
            a(f'buffer_load_dwordx4 v{vL16}, s[{S_WS}:{S_WS+3}], s{sT0} offen lds')
        for i in range(2):
            gaddr(sT0, None, i*1024, WS_V)
            a(f's_add_u32 m0, s{sDSA}, {8192 + i*1024}')
            a(f'buffer_load_dwordx4 v{vL16}, s[{S_WS}:{S_WS+3}], s{sT0} offen lds')
    dma_iter()
    a(f'''s_mov_b32 s{sRSK}, 0
          v_mov_b32 v{vKA}, v{vKB}
          v_mov_b32 v{vVA}, v{vVB}
          s_mov_b32 s{sC}, 0''')
    a('s_waitcnt vmcnt(6)')
    a(f'{MFMA} {vr(S[0],16)}, {vr(KF,4)}, {vr(Q,4)}, {vr(C,16)}')
    a('s_waitcnt vmcnt(4)')
    a('s_barrier')
    stamp(a, 6)
    a(f'ds_read_b128 {vr(KF,4)}, v{vKA} offset:4096')
    a(f'ds_read_b128 {vr(VF[0],4)}, v{vVA} offset:4096')
    a(f'ds_read_b128 {vr(VF[0]+4,4)}, v{vVA} offset:{4096+512}')
    a('s_nop 5')
    a('s_branch L_att_mid')
    a.label('L_att_loop')
    for j in range(8):
        if j == 4: a.label('L_att_mid')
        h1 = h2 = h3 = h4 = None
        if j == 7:
            h1 = lambda: a(f's_xor_b32 s{sRSK}, s{sRSK}, 32768')
            def h2():
                a(f'v_add_u32 v{vKA}, s{sRSK}, v{vKB}')
                a(f'v_mad_u32_u24 v{vVA}, v{vMK}, s{sRSK}, v{vVB}')
            def h3():
                a('s_waitcnt vmcnt(0)')
                if 'anobar' not in X: a('s_barrier')
                if PRIO: a(f's_setprio {PB+1 if not LV else 3}')
            def h4():
                a(f's_add_u32 s{sC}, s{sC}, 1')
                a(f's_cmp_lt_u32 s{sC}, 8')
        if j == 0:
            def h4():
                a(f's_cmp_lt_u32 s{sC}, 7')
                a('s_cbranch_scc0 L_att_nodma')
                dma_iter()
                a.label('L_att_nodma')
        if LV:
            if j == LV[0]: h4 = lambda: a('s_setprio 2')
            if j == LV[1]: h4 = lambda: a('s_setprio 1')
        elif j == LOWT and PRIO:
            h4 = lambda: a(f's_setprio {PB}')
        tile(j, ((j+1)%8)*1024, ((j+1)%8)*1024, h1=h1, h2=h2, h3=h3, h4=h4)
    a('s_cbranch_scc1 L_att_loop')
    a(f'{SMF} {vr(O,16)}, {vr(VF[1]+4,4)}, {vr(S[1]+8,8)}, v{vIX}')
    a('s_waitcnt lgkmcnt(0)')
    a('s_setprio 3')
    stamp(a, 7)
    a(f'v_mov_b32 v{t0}, {f32bits(2.0**100):#x}')
    a(f'v_cmp_nlt_f32 vcc, v{O+8}, v{t0}')
    a('s_nop 4')
    a('s_cbranch_vccnz L_att_fb')
    a.label('L_att_fin')
    a(f'v_rcp_f32 v{t0}, v{O+8}')
    for r in range(8): a(f'v_mul_f32 v{O+r}, v{t0}, v{O+r}')
    for r in range(4): a(f'v_cvt_pk_bf16_f32 v{PK+r}, v{O+2*r}, v{O+2*r+1}')
    for r in range(4): a(f'v_min_u32 v{PK+r}, -2, v{PK+r}')
    a(f'buffer_store_dwordx4 {vr(PK,4)}, v{vL16}, s[{S_WS}:{S_WS+3}], s{sZO} offen{WT}')
    a.label('L_a_end')
    stamp_end(a)
    a('s_endpgm')
    a.label('L_att_fb')
    a(f'''s_add_u32 s{sKT}, s{sGB}, {WS_K}
          s_mov_b32 s{sC}, 0
          s_mov_b32 s{sMK}, 0x0000ffff
          s_mov_b32 s{sMK+1}, 0x0000ffff
          v_mov_b32 v{t0}, 0xff800000''')
    a.label('L_att_fb1')
    a(f'buffer_load_dwordx4 {vr(KF,4)}, v{vL16}, s[{S_WS}:{S_WS+3}], s{sKT} offen')
    a('s_waitcnt vmcnt(0)')
    a(f'{MFMA} {vr(S[0],16)}, {vr(KF,4)}, {vr(Q,4)}, 0')
    for r in range(0, 16, 2): a(f'v_max3_f32 v{t0}, v{t0}, v{S[0]+r}, v{S[0]+r+1}')
    a(f'''s_add_u32 s{sKT}, s{sKT}, 1024
          s_add_u32 s{sC}, s{sC}, 1
          s_cmp_lt_u32 s{sC}, 64
          s_cbranch_scc1 L_att_fb1''')
    setC(t0)
    for r in range(O, O + 16): a(f'v_mov_b32 v{r}, 0')
    a(f'''s_sub_u32 s{sKT}, s{sKT}, 65536
          s_mov_b32 s{sC}, 0
          v_and_b32 v{vVA}, 0x1ff, v{vVB}''')
    a.label('L_att_fb2')
    a(f's_add_u32 s{sT0}, s{sKT}, {WS_V-WS_K}')
    a(f'buffer_load_dwordx4 {vr(KF,4)}, v{vL16}, s[{S_WS}:{S_WS+3}], s{sKT} offen')
    a(f's_mov_b64 exec, s[{sMK}:{sMK+1}]')
    a(f'buffer_load_dwordx4 {vr(VF[0],4)}, v{vVA}, s[{S_WS}:{S_WS+3}], s{sT0} offen')
    a(f'buffer_load_dwordx4 {vr(VF[0]+4,4)}, v{vVA}, s[{S_WS}:{S_WS+3}], s{sT0} offen offset:512')
    a('s_mov_b64 exec, -1')
    a('s_waitcnt vmcnt(0)')
    a(f'{MFMA} {vr(S[0],16)}, {vr(KF,4)}, {vr(Q,4)}, {vr(C,16)}')
    for r in range(16): a(f'v_exp_f32 v{S[0]+r}, v{S[0]+r}')
    a(f'{SMF} {vr(O,16)}, {vr(VF[0],4)}, {vr(S[0],8)}, v{vIX}')
    a(f'{SMF} {vr(O,16)}, {vr(VF[0]+4,4)}, {vr(S[0]+8,8)}, v{vIX}')
    a(f'''s_add_u32 s{sKT}, s{sKT}, 1024
          s_add_u32 s{sC}, s{sC}, 1
          s_cmp_lt_u32 s{sC}, 64
          s_nop 7
          s_cbranch_scc1 L_att_fb2''')
    a('s_nop 7')
    a('s_branch L_att_fin')

def role_f(a, opt):
    t0, t1 = 14, 15
    vN, vZ, vL16 = 16, 17, 18
    sJ, sI = 54, 55
    PF = opt.get('prio_f', 0)
    if 'qkvonly' in opt.get('x', '') or 'aonly' in opt.get('x', ''):
        stamp_end(a); a('s_endpgm')
    a(f's_setprio 3')
    a(f'v_mov_b32 v{vZ}, 0')
    sROW = 20
    vP, vD = 7, 8
    S_W = S_G
    SLOT, R, NS, D = 24576, 3, 16, 3
    sXO, sWOF, sDS, sRS, sDX, sGCT = 21, 22, 23, 26, 27, 32
    vDX, vDW = 2, 3
    vBX0, vBX1, vBW = 4, 5, 6
    vX0, vX1, vW = 9, 10, 11
    FA, FB = 24, 40
    ACC = 64
    a(f's_mul_i32 s{sGCT}, s{sJ}, 7\n s_add_u32 s{sGCT}, s{sGCT}, s{sI}')
    a(f'''s_lshl_b32 s{sT0}, s{sCT}, 3
          s_add_u32 s{sT0}, s{sT0}, s{sW}
          s_bfe_u32 s{sT1}, s{sT0}, 0x20002
          v_and_b32 v{t0}, 3, v0
          v_xor_b32 v{t0}, s{sT1}, v{t0}
          v_lshrrev_b32 v1, 2, v0
          v_lshlrev_b32 v1, 13, v1
          v_lshl_add_u32 v1, v{t0}, 4, v1
          s_lshl_b32 s{sT0}, s{sT0}, 6
          v_add_u32 v{vDX}, s{sT0}, v1''')
    a(f'''v_bfe_u32 v1, v0, 2, 2
          s_lshl_b32 s{sT0}, s{sW}, 2
          v_add_u32 v1, s{sT0}, v1
          v_mul_u32_u24 v{t0}, 3584, v1
          v_lshrrev_b32 v1, 4, v0
          v_lshl_add_u32 v{t0}, v1, 6, v{t0}
          v_and_b32 v1, 3, v0
          v_lshl_add_u32 v{t0}, v1, 4, v{t0}
          s_lshl_b32 s{sT0}, s{sGCT}, 8
          v_add_u32 v{vDW}, s{sT0}, v{t0}
          s_lshl_b32 s{sDX}, s{sW}, 10
          s_lshl_b32 s{sXO}, s{sRB}, 17
          s_add_u32 s{sXO}, s{sXO}, {WS_XN}
          s_and_b32 s{sT1}, s{sW}, 1
          s_lshl_b32 s{sT1}, s{sT1}, 12''')
    x_read_base(a, vBX0, vBX1, t0, sT1)
    w_lane_part(a, t0, 1024)
    a(f'''s_lshr_b32 s{sT0}, s{sW}, 1
          s_lshl_b32 s{sT0}, s{sT0}, 8
          s_add_u32 s{sT0}, s{sT0}, 8192
          v_add_u32 v{vBW}, s{sT0}, v1''')
    X = 24
    a(f'''v_min_u32 v{t0}, 27, v0
          v_cmp_lt_u32 vcc, 13, v{t0}
          v_lshlrev_b32 v{t0}, 7, v{t0}
          v_mov_b32 v{t1}, {3584 - 14*128}
          v_cndmask_b32 v{t1}, 0, v{t1}, vcc
          v_add_u32 v{vP}, v{t0}, v{t1}
          s_bfe_u32 s{sT0}, s2, 0x50003
          s_lshl_b32 s{sT0}, s{sT0}, 3
          s_add_u32 s{sT0}, s{sT0}, s{sW}
          s_mul_i32 s{sT0}, s{sT0}, {2*3584}
          s_mul_i32 s{sT1}, s{sJ}, 1792
          s_add_u32 s{sWOF}, s{sT0}, s{sT1}''')
    a('s_waitcnt lgkmcnt(0)')
    srd(a, S_G, 512*3584); srd(a, S_U, 512*3584); srd(a, S_WO, 512*1024); srd(a, S_WD, 1792*1024); srd(a, S_OUT, 2048*1024)
    a(f's_waitcnt vmcnt({3 if opt.get("p0", 1) == 2 else 1})')
    stamp(a, 1)
    SN = opt.get('snonce', 1)
    if SN: a(f's_load_dword s{sNON}, s[{S_DBG}:{S_DBG+1}], 0')
    else: nonce_issue(a, vN)
    for r in range(4):
        a(f'v_lshlrev_b32 v{X+2*r}, 16, v{20+r}')
        a(f'v_and_b32 v{X+2*r+1}, 0xffff0000, v{20+r}')
    def wave_sum(r):
        for m in ('quad_perm:[1,0,3,2]', 'quad_perm:[2,3,0,1]', 'row_half_mirror', 'row_mirror'):
            a(f'v_add_f32_dpp v{r}, v{r}, v{r} {m} row_mask:0xf bank_mask:0xf')
        for op in ('v_permlane16_swap_b32', 'v_permlane32_swap_b32'):
            a(f'v_mov_b32 v{t1}, v{r}')
            a(f'{op} v{t1}, v{r}')
            a(f'v_add_f32 v{r}, v{r}, v{t1}')
    vS, vQ = 12, 13
    a(f'v_add_f32 v{vS}, v{X}, v{X+1}')
    for r in range(2, 8): a(f'v_add_f32 v{vS}, v{vS}, v{X+r}')
    wave_sum(vS)
    a(f'v_mul_f32 v{vS}, {f32bits(1/512):#x}, v{vS}')
    a(f'v_mov_b32 v{vQ}, 0')
    for r in range(8):
        a(f'v_sub_f32 v{t0}, v{X+r}, v{vS}')
        a(f'v_fmac_f32 v{vQ}, v{t0}, v{t0}')
    wave_sum(vQ)
    a(f'''v_mul_f32 v{vQ}, {f32bits(1/512):#x}, v{vQ}
          v_cvt_pk_bf16_f32 v{t0}, v{vS}, v{vQ}
          v_lshlrev_b32 v{vS}, 16, v{t0}
          v_and_b32 v{vQ}, 0xffff0000, v{t0}
          v_add_f32 v{vQ}, {f32bits(1e-5):#x}, v{vQ}
          v_cvt_pk_bf16_f32 v{t0}, v{vQ}, v{vQ}
          v_lshlrev_b32 v{t0}, 16, v{t0}
          v_sqrt_f32 v{t0}, v{t0}
          v_cvt_pk_bf16_f32 v{t0}, v{t0}, v{t0}
          v_lshlrev_b32 v{t0}, 16, v{t0}
          v_rcp_f32 v{vQ}, v{t0}
          v_cvt_pk_bf16_f32 v32, v{vS}, v{t0}''')
    for r in range(8): a(f'v_sub_f32 v{X+r}, v{X+r}, v{vS}')
    for r in range(4):
        a(f'v_cvt_pk_bf16_f32 v{20+r}, v{X+2*r}, v{X+2*r+1}')
        a(f'v_lshlrev_b32 v{X+2*r}, 16, v{20+r}')
        a(f'v_and_b32 v{X+2*r+1}, 0xffff0000, v{20+r}')
        a(f'v_mul_f32 v{X+2*r}, v{vQ}, v{X+2*r}')
        a(f'v_mul_f32 v{X+2*r+1}, v{vQ}, v{X+2*r+1}')
        a(f'v_cvt_pk_bf16_f32 v{20+r}, v{X+2*r}, v{X+2*r+1}')
    if 'noxn' not in opt.get('x', ''): a(f'buffer_store_dwordx4 v[20:23], v{vDX}, s[{S_WS}:{S_WS+3}], s{sXO} offen{WT}')
    if SN:
        a('s_waitcnt lgkmcnt(0)')
        a(f'v_mov_b32 v{vN}, s{sNON}')
    else: a('s_waitcnt vmcnt(1)')
    nonce_finish(a, vN)
    a(f'''v_mov_b32 v33, s{sNON}
          s_lshr_b32 s{sT0}, s{sROW}, 7
          s_add_u32 s{sT0}, s{sT0}, {WS_ST}
          s_mov_b64 exec, 1
          buffer_store_dwordx2 v[32:33], off, s[{S_WS}:{S_WS+3}], s{sT0}{WT}
          s_mov_b64 exec, -1''')
    for r in list(range(FB, FB+16)) + list(range(ACC, ACC+64)): a(f'v_mov_b32 v{r}, 0')
    if opt.get('pf_gu', 1) == 1:
        a(f'buffer_load_dword v{vD}, v{vP}, s[{S_G}:{S_G+3}], s{sWOF} offen')
        a(f'buffer_load_dword v{vD}, v{vP}, s[{S_U}:{S_U+3}], s{sWOF} offen')
        a('s_waitcnt vmcnt(2)')
    else:
        a('s_waitcnt vmcnt(0)')
    a('s_barrier')
    stamp(a, 2)
    a(f's_cmp_lg_u32 s{sW}, 0')
    a('s_cbranch_scc1 L_f_nopub')
    flag_set(a, FL_LN, sRB, sCT, t0, t1)
    a.label('L_f_nopub')
    if 'lnonly' in opt.get('x', ''):
        stamp_end(a); a('s_endpgm')
    def dma_w(st):
        return [f's_add_u32 m0, s{sDX}, {(st%3)*SLOT + 8192}',
                f'buffer_load_dwordx4 v{vDW}, s[{S_W}:{S_W+3}], s{sWOF} offen lds',
                f's_add_u32 m0, s{sDX}, {(st%3)*SLOT + 16384}',
                f'buffer_load_dwordx4 v{vDW}, s[{S_U}:{S_U+3}], s{sWOF} offen lds',
                f's_add_u32 s{sWOF}, s{sWOF}, {32*3584}']
    def dma_x(st):
        return [f's_add_u32 m0, s{sDX}, {(st%3)*SLOT}',
                f'buffer_load_dwordx4 v{vL16}, s[{S_WS}:{S_WS+3}], s{sXO} offen lds',
                f's_add_u32 s{sXO}, s{sXO}, 8192']
    a(f's_mov_b32 s{sWOF}, 0')
    a(f's_cmp_ge_u32 s{sI}, 7')
    a('s_cbranch_scc1 L_f_idle')
    WE = opt.get('wearly', 0)
    if WE:
        for x in dma_w(0) + dma_w(1): a(x)
    a(f'''v_min_u32 v{vP}, 15, v0
          v_lshlrev_b32 v{vP}, 7, v{vP}
          s_lshl_b32 s{sT0}, s{sI}, 3
          s_add_u32 s{sT0}, s{sT0}, s{sW}
          s_lshl_b32 s{sT0}, s{sT0}, 11
          v_add_u32 v{vP}, s{sT0}, v{vP}''')
    a(f's_cmp_lg_u32 s{sW}, 0')
    a('s_cbranch_scc1 L_f_now1')
    flag_wait_s(a, FL_LN, sRB, 16)
    a.label('L_f_now1')
    a('s_barrier')
    stamp(a, 3)
    if opt.get('pf_xn', 1): a(f'buffer_load_dword v{vD}, v{vP}, s[{S_WS}:{S_WS+3}], s{sXO} offen')
    a(f's_add_u32 s{sXO}, s{sXO}, s{sDX}')
    for x in ((dma_x(0) + dma_x(1)) if WE else (dma_x(0) + dma_w(0) + dma_x(1) + dma_w(1))): a(x)
    a(f's_setprio {opt.get("prio_gu", PF)}')
    def reads(F, st, ks):
        o = (st % 3) * SLOT
        r = [f'ds_read_b128 {vr(F+4*i,4)}, v{(vBX0, vBX1)[ks]} offset:{o+i*2048}' for i in range(2)]
        for j in range(2):
            for t in range(2):
                r.append(f'ds_read_b64_tr_b16 {vr(F+8+4*j+2*t,2)}, v{vBW} offset:{o + (4*ks+t)*1024 + j*8192}')
        return r
    def mms(F):
        return [f'{MFMA} {vr(ACC+16*(2*i+j),16)}, {vr(F+8+4*j,4)}, {vr(F+4*i,4)}, {vr(ACC+16*(2*i+j),16)}' for i in range(2) for j in range(2)]
    def mm(F, other, per):
        for m in mms(F): a(m)
    GV = opt.get('guv', 4)
    def stage(st, vm, with_dma):
        a(f's_waitcnt vmcnt({vm}) lgkmcnt(0)')
        a('s_barrier')
        wd = with_dma and 'gnodma' not in opt.get('x', '')
        dx = dma_x(st+2) if wd else []
        dw = dma_w(st+2) if wd else []
        ra, rb_ = reads(FA, st, 0), reads(FB, st, 1)
        mb_, ma = mms(FB), mms(FA)
        W6 = ['s_waitcnt lgkmcnt(6)']
        if GV == 0:
            seq = [mb_[0]] + ra[:3] + [mb_[1]] + ra[3:] + [mb_[2]] + dx + [mb_[3]] + dw + rb_ + W6 + ma
        elif GV == 1:
            seq = [mb_[0]] + ra[:3] + [mb_[1]] + ra[3:] + [mb_[2]] + dx + [mb_[3]] + rb_ + W6 + [ma[0]] + dw[:2] + [ma[1], ma[2]] + dw[2:] + [ma[3]]
        elif GV == 2:
            seq = [mb_[0]] + ra[:3] + [mb_[1]] + ra[3:] + [mb_[2], mb_[3]] + rb_ + W6 + [ma[0]] + dx + [ma[1]] + dw[:2] + [ma[2]] + dw[2:] + [ma[3]]
        elif GV == 3:
            seq = [mb_[0]] + ra[:3] + [mb_[1]] + ra[3:] + [mb_[2], mb_[3]] + ['s_waitcnt lgkmcnt(0)', ma[0]] + rb_[:3] + [ma[1]] + rb_[3:] + [ma[2]] + dx + dw + [ma[3]]
        elif GV == 4:
            seq = [mb_[0]] + ra[:3] + dx + [mb_[1]] + ra[3:] + [mb_[2]] + dw[:2] + [mb_[3]] + ['s_waitcnt lgkmcnt(0)', ma[0]] + rb_[:3] + [ma[1]] + rb_[3:] + [ma[2]] + dw[2:] + [ma[3]]
        for x in seq: a(x)
    if WE: a('s_waitcnt vmcnt(1)')
    if 'gufine' in opt.get('x', ''):
        for st in range(9):
            stage(st, 3, True)
            a(f's_memrealtime s[{64+2*(st+2)}:{65+2*(st+2)}]')
        G.instr = False
    a(f's_mov_b32 s{sCNT}, {1 if "gufine" in opt.get("x", "") else 4}')
    a.label('L_f_gu_loop')
    for st in range(3): stage(st, 3, True)
    if 'guprog' in opt.get('x', ''):
        for c in range(4):
            l = uid('gp')
            a(f's_cmp_lg_u32 s{sCNT}, {4-c}\n s_cbranch_scc1 {l}')
            a(f's_memrealtime s[{64+2*(7+c)}:{65+2*(7+c)}]')
            a.label(l)
        G.instr = False
    a(f's_sub_u32 s{sCNT}, s{sCNT}, 1')
    a(f's_cmp_lg_u32 s{sCNT}, 0')
    a('s_cbranch_scc1 L_f_gu_loop')
    stage(12, 3, True); stage(13, 3, True); stage(14, 3, False); stage(15, 0, False)
    a('s_waitcnt lgkmcnt(0)')
    mm(FB, [], 0)
    a('s_setprio 3')
    if 'guprog' in opt.get('x', ''): a('s_memrealtime s[72:73]')
    stamp(a, 4)
    a(f'''s_and_b32 s{sT0}, s{sW}, 1
          s_lshl_b32 s{sT0}, s{sT0}, 1
          s_lshl_b32 s{sT1}, s{sRB}, 2
          s_add_u32 s{sT0}, s{sT0}, s{sT1}
          s_mul_i32 s{sT0}, s{sT0}, 144
          s_lshl_b32 s{sT1}, s{sGCT}, 3
          s_add_u32 s{sT0}, s{sT0}, s{sT1}
          s_and_b32 s{sT1}, s{sW}, 6
          s_add_u32 s{sT0}, s{sT0}, s{sT1}
          s_lshl_b32 s{sT0}, s{sT0}, 10
          s_add_u32 s{sT0}, s{sT0}, {WS_Z + 32*1024}''')
    for i in range(2):
        dG, dU = ACC + 32*i, ACC + 32*i + 16
        for r in range(16):
            a(f'v_max_f32 v{dG+r}, 0, v{dG+r}')
            a(f'v_mul_f32 v{dG+r}, v{dU+r}, v{dG+r}')
        for hh in range(2):
            o = dU + 4*hh
            for r in range(4):
                d = dG + 8*hh + 2*r
                a(f'v_cvt_pk_bf16_f32 v{o+r}, v{d}, v{d+1}')
            a(f'buffer_store_dwordx4 {vr(o,4)}, v{vL16}, s[{S_WS}:{S_WS+3}], s{sT0} offen offset:{hh*1024}{WT}')
        if i == 0: a(f's_add_u32 s{sT0}, s{sT0}, {144*1024}')
    def sent_check():
        l = uid('sc')
        a(f's_cmp_lg_u32 s{sW}, 0')
        a(f's_cbranch_scc1 {l}')
        if 'fonly' not in opt.get('x', ''): flag_wait_s(a, FL_QKV, sRB, 16, sleep=4, gsh=7, stride=2048)
        a.label(l)
    sent_check()
    a('s_waitcnt vmcnt(0)')
    a('s_barrier')
    a(f's_cmp_lg_u32 s{sW}, 0')
    a('s_cbranch_scc1 L_f_nogu')
    flag_set(a, FL_H, sRB, sGCT, t0, t1)
    a('s_branch L_f_nogu')
    a.label('L_f_idle')
    sent_check()
    PG = opt.get('pg', 0)
    if PG:
        a(f'''s_and_b32 s{sT0}, s{sRB}, 3
              s_lshl_b32 s{sT0}, s{sT0}, 3
              s_add_u32 s{sT0}, s{sT0}, s{sW}
              s_mul_i32 s{sT0}, s{sT0}, {2*3584}
              s_mul_i32 s{sT1}, s{sJ}, 1792
              s_add_u32 s{sT0}, s{sT0}, s{sT1}''')
        for k in range(1, 8):
            a(f's_add_u32 s{sT0}, s{sT0}, {64*3584}')
            a(f'buffer_load_dword v{vD}, v{vP}, s[{S_G}:{S_G+3}], s{sT0} offen')
            a(f'buffer_load_dword v{vD}, v{vP}, s[{S_U}:{S_U+3}], s{sT0} offen')
            a(f's_waitcnt vmcnt({2*(PG-1)})')
    if opt.get('pf_wd', 1):
        a(f'''v_lshrrev_b32 v{t0}, 2, v0
              v_and_b32 v{t1}, 3, v0
              v_lshlrev_b32 v{t0}, 10, v{t0}
              v_lshl_add_u32 v{vP}, v{t1}, 7, v{t0}
              s_and_b32 s{sT0}, s{sRB}, 3
              s_lshl_b32 s{sT0}, s{sT0}, 3
              s_add_u32 s{sT0}, s{sT0}, s{sW}
              s_lshl_b32 s{sT0}, s{sT0}, 14
              s_lshl_b32 s{sT1}, s{sJ}, 9
              s_add_u32 s{sT0}, s{sT0}, s{sT1}''')
        a(f'buffer_load_dword v{vD}, v{vP}, s[{S_WO}:{S_WO+3}], s{sT0} offen')
        for k in range(4):
            a(f'buffer_load_dword v{vD}, v{vP}, s[{S_WD}:{S_WD+3}], s{sT0} offen')
            a(f's_add_u32 s{sT0}, s{sT0}, {512*1024}')
            a('s_waitcnt vmcnt(0)')
    a.label('L_f_nogu')
    stamp(a, 5)
    sZ0, sWOFF, sLB, sNT = 19, 21, 22, 23
    vDW, vRA, vRB, vXO = 3, 4, 5, 6
    vRW = 12
    R2 = (13, 16, 17)
    XR, ZF = 20, 24
    WB = (96, 112, 56)
    a(f'''s_lshr_b32 s{sNT}, s{sCT}, 1
          v_lshrrev_b32 v{t0}, 5, v0
          v_lshlrev_b32 v{t0}, 2, v{t0}
          v_bfe_u32 v{t1}, v0, 2, 2
          v_add_u32 v{t0}, v{t0}, v{t1}
          v_lshlrev_b32 v{t0}, 10, v{t0}
          v_bfe_u32 v{t1}, v0, 4, 1
          v_lshl_add_u32 v{t0}, v{t1}, 6, v{t0}
          v_and_b32 v{t1}, 3, v0
          v_lshl_add_u32 v{t0}, v{t1}, 4, v{t0}
          s_lshl_b32 s{sT0}, s{sNT}, 7
          v_add_u32 v{vDW}, s{sT0}, v{t0}
          s_lshl_b32 s{sWOFF}, s{sW}, 14
          s_lshl_b32 s{sLB}, s{sW}, 11''')
    def issue_w(r):
        Sd = S_WD if r < 14 else S_WO
        woff = (r if r < 14 else r - 14) * 131072
        o = []
        for hh in range(2):
            o += [f's_add_u32 m0, s{sLB}, {(r%4)*16384 + hh*1024}\n s_add_u32 s{sT0}, s{sWOFF}, {woff + hh*8192}\n buffer_load_dwordx4 v{vDW}, s[{Sd}:{Sd+3}], s{sT0} offen lds']
        return o
    def issue_z(r):
        return [f's_add_u32 s{sT0}, s{sZ0}, {(32 + 8*r + 4*u)*1024}\n buffer_load_dwordx4 {vr(ZF+8*(r%4)+4*u,4)}, v{vL16}, s[{S_WS}:{S_WS+3}], s{sT0} offen' for u in range(2)]
    for r in range(4):
        for x in issue_w(r): a(x)
    a(f'''s_lshr_b32 s{sT0}, s{sW}, 2
          s_lshl_b32 s{sT1}, s{sRB}, 2
          s_add_u32 s{sT0}, s{sT0}, s{sT1}
          s_and_b32 s{sT1}, s{sCT}, 1
          s_lshl_b32 s{sT1}, s{sT1}, 1
          s_add_u32 s{sT0}, s{sT0}, s{sT1}
          s_mul_i32 s{sZ0}, s{sT0}, 144
          s_and_b32 s{sT1}, s{sW}, 3
          s_add_u32 s{sZ0}, s{sZ0}, s{sT1}
          s_lshl_b32 s{sZ0}, s{sZ0}, 10
          s_add_u32 s{sZ0}, s{sZ0}, {WS_Z}
          v_and_b32 v{t0}, 31, v0
          s_lshl_b32 s{sT0}, s{sT0}, 5
          v_add_u32 v{t0}, s{sT0}, v{t0}
          v_lshlrev_b32 v{t0}, 10, v{t0}
          v_lshrrev_b32 v{t1}, 5, v0
          v_lshl_add_u32 v{t0}, v{t1}, 4, v{t0}
          s_lshl_b32 s{sT0}, s{sNT}, 7
          s_lshl_b32 s{sT1}, s{sT1}, 5
          s_add_u32 s{sT0}, s{sT0}, s{sT1}
          v_add_u32 v{vXO}, s{sT0}, v{t0}''')
    a(f'buffer_load_dwordx4 {vr(XR,4)}, v{vXO}, s[{S_X}:{S_X+3}], 0 offen')
    a(f'''v_lshrrev_b32 v{t0}, 5, v0
          v_lshlrev_b32 v{t0}, 9, v{t0}
          v_bfe_u32 v{t1}, v0, 2, 2
          v_lshl_add_u32 v{t0}, v{t1}, 6, v{t0}
          v_bfe_u32 v{t1}, v0, 4, 1
          s_and_b32 s{sT0}, s{sW}, 1
          v_xor_b32 v{t1}, s{sT0}, v{t1}
          v_lshl_add_u32 v{t0}, v{t1}, 5, v{t0}
          v_and_b32 v{t1}, 1, v0
          v_lshl_add_u32 v{t0}, v{t1}, 4, v{t0}
          v_bfe_u32 v{t1}, v0, 1, 1
          v_lshl_add_u32 v{t0}, v{t1}, 3, v{t0}
          s_and_b32 s{sT0}, s{sW}, 2
          s_lshl_b32 s{sT0}, s{sT0}, 7
          s_and_b32 s{sT1}, s{sW}, 3
          s_lshl_b32 s{sT1}, s{sT1}, 11
          s_add_u32 s{sT0}, s{sT0}, s{sT1}
          v_add_u32 v{vRA}, s{sT0}, v{t0}
          v_xor_b32 v{vRB}, 256, v{vRA}
          s_mul_i32 s{sT0}, s{sW}, 6144
          s_add_u32 s{sT0}, s{sT0}, 32768
          v_add_u32 v{vRW}, s{sT0}, v{vL16}''')
    for p in range(1, 4):
        a(f's_xor_b32 s{sT0}, s{sW}, {p}\n s_mul_i32 s{sT0}, s{sT0}, 6144\n s_add_u32 s{sT0}, s{sT0}, 32768\n v_add_u32 v{R2[p-1]}, s{sT0}, v{vL16}')
    for r in range(8, 32): a(f'v_mov_b32 v{ACC+r}, 0')
    FO = 'fonly' in opt.get('x', '')
    a(f's_cmp_lg_u32 s{sW}, 0')
    a('s_cbranch_scc1 L_f_now2')
    flag_wait_s(a, FL_H, sRB, 14, sleep=opt.get('hsleep', 1))
    a.label('L_f_now2')
    a('s_waitcnt vmcnt(0)')
    a('s_barrier')
    stamp(a, 6)
    q = []
    for r in range(4):
        for x in issue_z(r): a(x)
        q += [f'z{r}']*2
    for r in range(4):
        a(f'v_lshlrev_b32 v{ACC+2*r}, 16, v{XR+r}')
        a(f'v_and_b32 v{ACC+2*r+1}, 0xffff0000, v{XR+r}')
    a(f's_setprio {PF}')
    def need(tags):
        last = max((k for k, t in enumerate(q) if t in tags), default=-1)
        n = len(q) - 1 - last
        del q[:last+1]
        return n
    def wreads(r, B):
        return [f'ds_read_b64_tr_b16 {vr(B+8*u+4*j+2*t,2)}, v{(vRA,vRB)[j]} offset:{(r%4)*16384 + u*8192 + t*1024}' for u in range(2) for j in range(2) for t in range(2)]
    def dmm(B, Z):
        return [f'{MFMA} {vr(ACC+16*j,16)}, {vr(B+8*u+4*j,4)}, {vr(Z+4*u,4)}, {vr(ACC+16*j,16)}' for u in range(2) for j in range(2)]
    for x in wreads(0, WB[0]): a(x)
    for p in range(1, 15):
        a(f's_waitcnt vmcnt({need({f"w{p}", f"z{p-1}"})}) lgkmcnt(0)')
        a('s_barrier')
        ms = dmm(WB[(p-1) % 2], ZF + 8*((p-1) % 4))
        rd = wreads(p, WB[p % 2])
        iw = issue_w(p + 3); q += [f'w{p+3}']*2
        iz = []
        if p + 3 < 14:
            iz = issue_z(p + 3); q += [f'z{p+3}']*2
        for x in [ms[0]] + rd[:4] + [ms[1]] + rd[4:] + [ms[2]] + iw + [ms[3]] + iz: a(x)
    stamp(a, 7)
    NL = opt.get('nlight', 2)
    sPP = 26
    a(f's_add_u32 s{sPP}, s{sZ0}, s{S_WS}')
    a(f's_addc_u32 s{sPP+1}, s{S_WS+1}, 0')
    def light():
        for i in range(NL): a(f's_load_dword s{86+i}, s[{sPP}:{sPP+1}], {i*(8//NL)*4096 + 1020} glc')
    light()
    a('s_waitcnt vmcnt(0)')
    a('s_barrier')
    for x in wreads(15, WB[1]): a(x)
    a('s_setprio 3')
    a('s_waitcnt lgkmcnt(0)')
    a('s_barrier')
    stamp(a, 8)
    sDN = 20
    a(f's_mov_b32 s{sSPIN}, {SPIN_MAX}')
    a.label('L_f_lp')
    for i in range(1, NL): a(f's_max_u32 s86, s86, s{86+i}')
    a('s_cmp_lg_u32 s86, -1')
    a('s_cbranch_scc1 L_f_lpd')
    a(f's_sub_u32 s{sSPIN}, s{sSPIN}, 1')
    a('s_cbranch_scc1 L_f_lpd')
    if opt.get("lsleep", 0): a(f's_sleep {opt.get("lsleep")}')
    light()
    a('s_waitcnt lgkmcnt(0)')
    if not FO: a('s_branch L_f_lp')
    a.label('L_f_lpd')
    a(f's_mov_b32 s{sDN}, 0')
    a(f's_mov_b32 s{sSPIN}, {SPIN_MAX}')
    a.label('L_f_op')
    for i in range(8):
        l = uid('sk')
        a(f's_bitcmp1_b32 s{sDN}, {i}')
        a(f's_cbranch_scc1 {l}')
        a(f's_add_u32 s{sT0}, s{sZ0}, {i*4096}')
        a(f'buffer_load_dwordx4 {vr(ZF+4*i,4)}, v{vL16}, s[{S_WS}:{S_WS+3}], s{sT0} offen{WT}')
        a.label(l)
    a('s_waitcnt vmcnt(0)')
    for i in range(8):
        t = (t0, t1)[i % 2]
        a(f'v_max3_u32 v{t}, v{ZF+4*i}, v{ZF+4*i+1}, v{ZF+4*i+2}')
        a(f'v_max_u32 v{t}, v{t}, v{ZF+4*i+3}')
        a(f'v_cmp_eq_u32 s[{86+2*i}:{87+2*i}], -1, v{t}')
    for i in range(8):
        a(f's_cmp_eq_u64 s[{86+2*i}:{87+2*i}], 0')
        a(f's_cselect_b32 s{sT0}, {1 << i}, 0')
        a(f's_or_b32 s{sDN}, s{sDN}, s{sT0}')
    a(f's_cmp_eq_u32 s{sDN}, 0xff')
    a('s_cbranch_scc1 L_f_opd')
    a(f's_sub_u32 s{sSPIN}, s{sSPIN}, 1')
    if opt.get('osleep', 0): a(f's_sleep {opt.get("osleep")}')
    if not FO: a('s_cbranch_scc0 L_f_op')
    a.label('L_f_opd')
    stamp(a, 9)
    for r in range(4):
        if r >= 2: a(f's_waitcnt lgkmcnt({8*(3-r)})')
        for m in dmm(WB[r % 2], ZF + 8*r): a(m)
        if r < 2:
            for x in wreads(16 + r, WB[r % 2]): a(x)
    for k in range(2, 8): a(f'ds_write_b128 v{vRW}, {vr(ACC+4*k,4)} offset:{(k-2)*1024}')
    a('s_waitcnt lgkmcnt(0)')
    a('s_barrier')
    for p in range(1, 4):
        a(f'ds_read_b128 {vr(ZF+8*p,4)}, v{R2[p-1]} offset:{(p-1)*2048}')
        a(f'ds_read_b128 {vr(ZF+8*p+4,4)}, v{R2[p-1]} offset:{(p-1)*2048+1024}')
    for p in range(1, 4):
        a(f's_waitcnt lgkmcnt({2*(3-p)})')
        for r in range(8): a(f'v_add_f32 v{ACC+r}, v{ACC+r}, v{ZF+8*p+r}')
    for r in range(4): a(f'v_cvt_pk_bf16_f32 v{XR+r}, v{ACC+2*r}, v{ACC+2*r+1}')
    a(f'buffer_store_dwordx4 {vr(XR,4)}, v{vXO}, s[{S_OUT}:{S_OUT+3}], 0 offen{opt.get("outfl", "")}')
    stamp(a, 10)
    if 'guprog' in opt.get('x', '') or 'gufine' in opt.get('x', ''): G.instr = True
    stamp_end(a)
    a('s_endpgm')

def build(opt=None, instr=False):
    opt = opt or {}
    G.instr = instr
    _uid[0] = 0
    HDR = open('cdna_kernels/%s.s.ref' % NAME).read().split('; Override launch')[0]
    a = Asm()
    K = NAME + '_kernel'
    a.l += ['.text', f'.globl {K}', '.p2align 8', f'.type {K},@function', f'{K}:']
    stamp_begin(a)
    a(f'''s_load_dwordx2 s[{S_X}:{S_X+1}], s[0:1], {KA_X}
          s_load_dwordx2 s[{S_W}:{S_W+1}], s[0:1], {KA_WQKV}
          s_load_dwordx2 s[{S_WS}:{S_WS+1}], s[0:1], {KA_WS}
          s_load_dwordx2 s[{S_DBG}:{S_DBG+1}], s[0:1], {KA_DBG}
          s_cmp_ge_u32 s2, 512
          s_cbranch_scc1 L_exit
          v_lshrrev_b32 v1, 6, v0
          v_readfirstlane_b32 s{sW}, v1
          v_and_b32 v0, 63, v0
          s_and_b32 s54, s2, 7
          s_bfe_u32 s55, s2, 0x50003
          s_lshr_b32 s{sRB}, s54, 1
          s_lshl_b32 s{sRB}, s{sRB}, 2
          s_and_b32 s{sCT}, s55, 3
          s_add_u32 s{sRB}, s{sRB}, s{sCT}
          s_lshr_b32 s55, s55, 2
          s_and_b32 s54, s54, 1
          s_lshl_b32 s{sCT}, s54, 3
          s_add_u32 s{sCT}, s{sCT}, s55
          v_lshlrev_b32 v18, 4, v0''')
    a(f'''s_bfe_u32 s{sT0}, s2, 0x10008
          s_xor_b32 s{sT0}, s{sT0}, 1
          s_lshl_b32 s{sT0}, s{sT0}, 3
          s_xor_b32 s{sT0}, s{sT0}, s{sCT}
          s_lshl_b32 s20, s{sRB}, 4
          s_add_u32 s20, s20, s{sT0}
          s_lshl_b32 s20, s20, 3
          s_add_u32 s20, s20, s{sW}
          s_lshl_b32 s20, s20, 10''')
    a(f'''v_min_u32 v1, 11, v0
          v_lshrrev_b32 v2, 2, v1
          v_and_b32 v1, 3, v1
          v_lshlrev_b32 v1, 7, v1
          v_lshl_add_u32 v1, v2, 10, v1
          s_and_b32 s{sT0}, s2, 0x1f8
          s_add_u32 s{sT0}, s{sT0}, s{sW}
          s_mul_i32 s{sT0}, s{sT0}, 3072
          s_lshl_b32 s{sT1}, s54, 9
          s_add_u32 s{sT0}, s{sT0}, s{sT1}''')
    srd(a, S_X, 2048*1024); srd(a, S_W, 512*3072); srd(a, S_WS, WS_SIZE); srd(a, S_DBG, 256)
    a('s_waitcnt lgkmcnt(0)')
    a(f's_xor_b32 s26, s{sW}, 7')
    a(f's_or_b32 s26, s2, s26')
    a('s_cbranch_scc1 L_a_nonw')
    a(f's_memrealtime s[26:27]')
    a('s_waitcnt lgkmcnt(0)')
    a(f's_or_b32 s26, s26, 1')
    a(f'v_mov_b32 v14, s26')
    a(f'v_mov_b32 v15, 0')
    a(f'buffer_store_dword v14, v15, s[{S_DBG}:{S_DBG+3}], 0 offen{WT}')
    a.label('L_a_nonw')
    P0 = opt.get('p0', 1)
    assert P0 != 1 and not opt.get('pf_code', 1)
    if P0 == 1:
        a(f'buffer_load_dwordx4 v[20:23], v18, s[{S_X}:{S_X+3}], s20 offen')
        a(f'buffer_load_dword v{vPF}, v1, s[{S_W}:{S_W+3}], s{sT0} offen')
        a('s_cmp_ge_u32 s2, 256')
        a('s_cbranch_scc1 L_role_f')
    else:
        a('s_cmp_lt_u32 s2, 256')
        a('s_cbranch_scc1 L_role_a')
        a(f'buffer_load_dwordx4 v[20:23], v18, s[{S_X}:{S_X+3}], s20 offen')
        if P0 == 0:
            a(f'buffer_load_dword v{vPF}, off, s[{S_W}:{S_W+3}], s{sT0}')
        else:
            a(f'buffer_load_dword v{vPF}, v1, s[{S_W}:{S_W+3}], s{sT0} offen')
            a(f's_sub_u32 s{sT0}, s{sT0}, {256*3072}')
            a(f'buffer_load_dword v{vPF}, v1, s[{S_W}:{S_W+3}], s{sT0} offen')
            a(f'v_min_u32 v1, 7, v0\n v_lshlrev_b32 v1, 7, v1\n s_xor_b32 s{sT0}, s20, 65536')
            a(f'buffer_load_dword v{vPF}, v1, s[{S_X}:{S_X+3}], s{sT0} offen')
        a('s_branch L_role_f')
        a.label('L_role_a')
    if opt.get('pf_code', 1):
        a('s_cmp_ge_u32 s2, 8')
        a('s_cbranch_scc1 L_nocode')
        a(f's_getpc_b64 s[{sT0}:{sT1}]')
        a.label('L_pc')
        a(f's_lshl_b32 s26, s{sW}, 13')
        a(f'v_lshl_add_u32 v1, v0, 7, s26')
        a(f'v_min_u32 v1, L_exit-L_pc, v1')
        a(f'global_load_dword v{vPF}, v1, s[{sT0}:{sT1}]')
        a.label('L_nocode')
    role_a(a, opt)
    a.label('L_role_f')
    a(f'''s_load_dwordx2 s[{S_G}:{S_G+1}], s[0:1], {KA_G}
          s_load_dwordx2 s[{S_U}:{S_U+1}], s[0:1], {KA_U}
          s_load_dwordx2 s[{S_WO}:{S_WO+1}], s[0:1], {KA_WO}
          s_load_dwordx2 s[{S_WD}:{S_WD+1}], s[0:1], {KA_D}
          s_load_dwordx2 s[{S_OUT}:{S_OUT+1}], s[0:1], {KA_OUT}''')
    role_f(a, opt)
    a.label('L_exit')
    a('s_endpgm')
    lines = fix_hazards(a.l)
    for p in check_branches(lines): print('BRANCH HAZARD', p, file=sys.stderr)
    out = HDR + '; @launch grid=(512,1,1) block=(512,1,1) lds=81920\n'
    out += '.amdgcn_target "amdgcn-amd-amdhsa--gfx950"\n' + '\n'.join(lines) + '\n'
    out += f'''.section .rodata,"a"
.p2align 6
.amdhsa_kernel {K}
  .amdhsa_next_free_vgpr 128
  .amdhsa_next_free_sgpr 102
  .amdhsa_accum_offset 128
  .amdhsa_group_segment_fixed_size 0
  .amdhsa_kernarg_size 80
  .amdhsa_user_sgpr_count 2
  .amdhsa_user_sgpr_kernarg_segment_ptr 1
  .amdhsa_system_sgpr_workgroup_id_x 1
.end_amdhsa_kernel
'''
    return out

if __name__ == '__main__':
    NP = dict(pf_gu=0, pf_xn=0, pf_wd=0, pf_h=0, pf_code=0, lv=(3, 6), p0=2, nlight=8, lall=1, lsleep=0)
    B = 'estop lnonly qprog '
    V = dict(a=dict(NP, x=B), b=dict(NP, x=B + 'qnord qnomm'), c=dict(NP, x=B, dmafirst=1), d=dict(NP, x=B, p0=0), e=dict(NP, prio_gu=2, prio_f=2), f=dict(NP, prio_gu=2, prio_f=2, p0=0))
    for n, o in V.items():
        open(f't_{n}.s', 'w').write(build(o, instr=True))
        open(f'u_{n}.s', 'w').write(build(o))
```

```python
from dsl import *
def add_diag(txt, role, field, mode, mult=4):
    a = Asm()
    a.l += ['.text', '.globl diag_kernel', '.p2align 8', '.type diag_kernel,@function', 'diag_kernel:']
    a('s_cmp_ge_u32 s2, 1\n s_cbranch_scc1 L_diag_end')
    a('s_load_dwordx2 s[4:5], s[0:1], 72')
    a('s_waitcnt lgkmcnt(0)\n s_mov_b32 s6, 0x10000000\n s_mov_b32 s7, 0x00020000')
    a('v_lshlrev_b32 v1, 6, v0')
    base = 32 << 20
    for i in range(64): a(f's_mov_b32 s8, {base + i*4096 + 16}\n buffer_load_dword v{10+i}, v1, s[4:7], s8 offen')
    r0 = 0 if role == 'A' else 32
    a('s_waitcnt vmcnt(0)')
    for i in range(32): a(f's_mov_b32 s8, {base + (r0+i)*4096 + 16 + 4*field}\n buffer_load_dword v{80+i}, v1, s[4:7], s8 offen')
    for i in range(1, 64): a(f'v_min_u32 v10, v10, v{10+i}')
    a('v_readlane_b32 s10, v10, 0')
    for l in range(1, 64): a(f'v_readlane_b32 s12, v10, {l}\n s_min_u32 s10, s10, s12')
    a('s_waitcnt vmcnt(0)')
    for i in range(32):
        a(f'v_max_u32 v{80+i}, s10, v{80+i}\n v_subrev_u32 v{80+i}, s10, v{80+i}')
    op = 'max_u32' if mode == 'max' else 'add_u32'
    for i in range(1, 32): a(f'v_{op} v80, v80, v{80+i}')
    a('v_readlane_b32 s11, v80, 0')
    for l in range(1, 64): a(f'v_readlane_b32 s12, v80, {l}\n s_{op} s11, s11, s12')
    a(f's_mul_i32 s13, s11, {mult}')
    if mode != 'max': a('s_lshr_b32 s13, s13, 11')
    a('s_min_u32 s13, s13, 100000')
    a('s_memrealtime s[14:15]\n s_waitcnt lgkmcnt(0)')
    a.label('L_diag_spin')
    a('s_memrealtime s[16:17]\n s_waitcnt lgkmcnt(0)\n s_sub_u32 s16, s16, s14\n s_cmp_lt_u32 s16, s13\n s_cbranch_scc1 L_diag_spin')
    a.label('L_diag_end')
    a('s_endpgm')
    K = 'parallel_sum__mha_block__glu_gated_reglu__prompt_kernel'
    old = '; @launch grid=(512,1,1) block=(512,1,1) lds=81920\n'
    assert old in txt
    txt = txt.replace(old, f'; @launch kernel={K} grid=(512,1,1) block=(512,1,1) lds=81920\n; @launch kernel=diag_kernel grid=(1,1,1) block=(64,1,1) lds=0\n')
    txt += '\n'.join(fix_hazards(a.l)) + '''
.section .rodata,"a"
.p2align 6
.amdhsa_kernel diag_kernel
  .amdhsa_next_free_vgpr 128
  .amdhsa_next_free_sgpr 32
  .amdhsa_accum_offset 128
  .amdhsa_group_segment_fixed_size 0
  .amdhsa_kernarg_size 80
  .amdhsa_user_sgpr_count 2
  .amdhsa_user_sgpr_kernarg_segment_ptr 1
  .amdhsa_system_sgpr_workgroup_id_x 1
.end_amdhsa_kernel
'''
    return txt
if __name__ == '__main__':
    import sys
    src = open(sys.argv[1]).read()
    specs = sys.argv[2:]
    for n, sp in zip('abcdef', specs):
        role, field, mode, mult = sp.split(',')
        open(f'd_{n}.s', 'w').write(add_diag(src, role, int(field), mode, int(mult)))
```

```python
import sys, importlib
sys.path.insert(0, 'gen')
from diag2 import add_diag
m = importlib.import_module(sys.argv[1])
old = "    s_min_u32 s13, s13, 100000\n"
for n, spec in zip('abcdef', sys.argv[2:]):
    o = dict(m.BEST, **eval('dict(' + spec + ')'))
    t = add_diag(m.build(o, instr='start'), 'F', 11, 'max', 4)
    t = t.replace("diag_kernel:\n", "diag_kernel:\n    s_memrealtime s[20:21]\n").replace(old, "    s_sub_u32 s13, s20, s10\n    s_mul_i32 s13, s13, 4\n" + old)
    open(f'd_{n}.s', 'w').write(t)
```
